```python
import torch

def _softmax(x, axis=-1):
    return torch.softmax(x, dim=axis)
def _gelu(x):
    return torch.nn.functional.gelu(x, approximate="tanh")
def _silu(x):
    return torch.nn.functional.silu(x)
def _sigmoid(x):
    return torch.sigmoid(x)
def _layernorm(x, axis=-1, eps=1e-5):
    m = x.mean(dim=axis, keepdim=True)
    v = x.var(dim=axis, keepdim=True, unbiased=False)
    return (x - m) / torch.sqrt(v + eps)
def _scatter_add(tgt, idx, src, axis=0):
    return tgt.clone().index_add_(axis, idx, src)
def _segment_sum(src, seg, n):
    out = torch.zeros((n,) + src.shape[1:], dtype=src.dtype)
    return out.index_add_(0, seg, src)
def _pad(x, pw):
    flat = tuple(v for pair in reversed(pw) for v in pair)
    return torch.nn.functional.pad(x, flat)

kernel_name = 'standalone__edge_featured_mpnn_egc__graph'

def setup_inputs():

    _w = (lambda a: (lambda t: t.to(torch.bfloat16) if t.is_floating_point() else t)(torch.as_tensor(a)))
    N, deg, D, De = 12500, 64, 64, max(0, 1)
    E = N * deg
    return {
        "x": _w((lambda *s: torch.randn(*s, dtype=torch.bfloat16) * 0.2)(N, D)),
        "e_attr": _w((lambda *s: torch.randn(*s, dtype=torch.bfloat16) * 0.2)(E, De)),
        "src": _w((lambda lo, hi, *s: torch.randint(lo, hi, s))(0, N, E).to(torch.int64)),
        "dst": _w((lambda lo, hi, *s: torch.randint(lo, hi, s))(0, N, E).to(torch.int64)),
        "u_w": _w((lambda *s: torch.randn(*s, dtype=torch.bfloat16) * 0.05)(D, D)),
        "v_w": _w((lambda *s: torch.randn(*s, dtype=torch.bfloat16) * 0.05)(D, D)),
        "g_w": _w((lambda *s: torch.randn(*s, dtype=torch.bfloat16) * 0.2)(2 * D + De, D)),
    }

def reference(x, e_attr, src, dst, u_w, v_w, g_w):
    N, D = x.shape
    g_in = torch.concatenate([x[dst], x[src], e_attr], axis=-1)
    eta = _sigmoid(g_in @ g_w)
    hv = x @ v_w
    msg = eta * hv[src]
    agg = _segment_sum(msg, dst, N)
    return _silu(x @ u_w + agg)
```

```python
import sys

N = 12500
NB = 250
NPB = 50
CH = 3200
NW = 250
NG = 49
QH_OFF = 0
P_OFF = 0x400000
U_OFF = 0x800000
REC_OFF = 0xC00000
OFFS_OFF = 0x1400000
NLOG2E = 0xBFB8AA3B

OPT = dict(dot2=False, nomask=False)
for a in sys.argv[1:]:
    if '=' in a:
        k, v = a.split('=')
        OPT[k] = int(v)

out = []
def e(s=''):
    out.append(s)

HEADER = """; Kernarg layout for this problem (80 bytes, ptrs only, base s[0:1]):
;   offset   0: d_in[0] x  shape=(12500, 64) dtype=bfloat16
;   offset   8: d_in[1] e_attr  shape=(800000, 1) dtype=bfloat16
;   offset  16: d_in[2] src  shape=(800000,) dtype=int32
;   offset  24: d_in[3] dst  shape=(800000,) dtype=int32
;   offset  32: d_in[4] u_w  shape=(64, 64) dtype=bfloat16
;   offset  40: d_in[5] v_w  shape=(64, 64) dtype=bfloat16
;   offset  48: d_in[6] g_w  shape=(129, 64) dtype=bfloat16
;   offset  56: d_out     shape=(12500, 64) dtype=bfloat16
;   offset  64: d_debug   256 bytes
;   offset  72: d_ws      268435456 bytes workspace
; @launch kernel=prep_kernel grid=(%d,1,1) block=(1024,1,1) lds=40960
; @launch kernel=agg_kernel grid=(%d,1,1) block=(1024,1,1) lds=66560
.amdgcn_target "amdgcn-amd-amdhsa--gfx950"
.text""" % (NW + NG, NB)
e(HEADER)

def srd(d, lo, hi, size, add=None):
    if add is None:
        e(f"  s_mov_b32 s{d}, s{lo}")
        e(f"  s_mov_b32 s{d+1}, s{hi}")
    else:
        e(f"  s_add_u32 s{d}, s{lo}, {add}")
        e(f"  s_addc_u32 s{d+1}, s{hi}, 0")
    e(f"  s_mov_b32 s{d+2}, {size}")
    e(f"  s_mov_b32 s{d+3}, 0x20000")

def dpp_scan(v):
    for sh in (1, 2, 4, 8):
        e("  s_nop 1")
        e(f"  v_add_u32_dpp v{v}, v{v}, v{v} row_shr:{sh} row_mask:0xf bank_mask:0xf bound_ctrl:0")
    e("  s_nop 1")
    e(f"  v_add_u32_dpp v{v}, v{v}, v{v} row_bcast:15 row_mask:0xa bank_mask:0xf")
    e("  s_nop 1")
    e(f"  v_add_u32_dpp v{v}, v{v}, v{v} row_bcast:31 row_mask:0xc bank_mask:0xf")
    e("  s_nop 1")

e(".globl prep_kernel")
e(".p2align 8")
e(".type prep_kernel,@function")
e("prep_kernel:")
e(f"  s_cmp_ge_u32 s2, {NW+NG}")
e("  s_cbranch_scc1 A_done")
e("  s_load_dwordx16 s[4:19], s[0:1], 0")
e("  s_load_dwordx2 s[20:21], s[0:1], 72")
e(f"  s_cmp_ge_u32 s2, {NW}")
e("  s_cbranch_scc1 A_gemm")
e("  s_waitcnt lgkmcnt(0)")
e(f"  s_mul_i32 s22, s2, {CH*4}")
srd(24, 10, 11, CH*4, "s22")
srd(28, 8, 9, CH*4, "s22")
e(f"  s_mul_i32 s22, s2, {CH*2}")
srd(32, 6, 7, CH*2, "s22")
e(f"  s_mul_i32 s22, s2, {CH*8}")
e(f"  s_add_u32 s22, s22, {REC_OFF}")
srd(36, 20, 21, CH*8, "s22")
srd(40, 20, 21, 256*1024, OFFS_OFF)
e("  s_mov_b32 s48, 0xffff0000")
e("  s_lshl_b32 s49, s2, 2")
e("  v_lshlrev_b32 v1, 4, v0")
e("  v_lshlrev_b32 v2, 3, v0")
e("  v_lshlrev_b32 v3, 2, v0")
e("  v_mov_b32 v4, 0")
e("  v_mov_b32 v5, 1")
e("  ds_write_b32 v3, v4")
e(f"  v_cmp_gt_u32 vcc, {CH//4}, v0")
e("  s_mov_b64 s[44:45], vcc")
e("  s_mov_b64 exec, s[44:45]")
e("  s_cbranch_execz A_skip1")
e("  buffer_load_dwordx4 v[8:11], v1, s[24:27], 0 offen")
e("  buffer_load_dwordx4 v[12:15], v1, s[28:31], 0 offen")
e("  buffer_load_dwordx2 v[16:17], v2, s[32:35], 0 offen")
e("A_skip1:")
e("  s_mov_b64 exec, -1")
e("  s_waitcnt lgkmcnt(0)")
e("  s_barrier")
e("  s_mov_b64 exec, s[44:45]")
e("  s_cbranch_execz A_skip2")
e("  s_waitcnt vmcnt(0)")
for i in range(4):
    e(f"  v_mul_u32_u24 v{26+i}, 5243, v{8+i}")
    e(f"  v_lshrrev_b32 v{26+i}, 18, v{26+i}")
    e(f"  v_mul_u32_u24 v{34+i}, {NPB}, v{26+i}")
    e(f"  v_sub_u32 v{19+2*i}, v{8+i}, v{34+i}")
    e(f"  v_lshlrev_b32 v{26+i}, 2, v{26+i}")
    e(f"  ds_add_rtn_u32 v{30+i}, v{26+i}, v5")
e("  v_lshl_or_b32 v18, v16, 16, v12")
e("  v_and_or_b32 v20, v16, s48, v13")
e("  v_lshl_or_b32 v22, v17, 16, v14")
e("  v_and_or_b32 v24, v17, s48, v15")
e("A_skip2:")
e("  s_mov_b64 exec, -1")
e("  s_waitcnt lgkmcnt(0)")
e("  s_barrier")
e("  v_readfirstlane_b32 s50, v0")
e("  s_nop 3")
e("  s_cmp_ge_u32 s50, 64")
e("  s_cbranch_scc1 A_skip3")
e("  ds_read_b128 v[44:47], v1")
e("  s_waitcnt lgkmcnt(0)")
e("  v_add_u32 v49, v44, v45")
e("  v_add_u32 v50, v49, v46")
e("  v_add_u32 v51, v50, v47")
e("  v_mov_b32 v52, v51")
dpp_scan(52)
e("  v_sub_u32 v40, v52, v51")
e("  v_add_u32 v41, v40, v44")
e("  v_add_u32 v42, v40, v49")
e("  v_add_u32 v43, v40, v50")
e("  ds_write_b128 v1, v[40:43] offset:1024")
e("  v_lshlrev_b32 v53, 12, v0")
for i in range(4):
    e(f"  v_lshl_or_b32 v{44+i}, v{44+i}, 16, v{40+i}")
    e(f"  buffer_store_dword v{44+i}, v53, s[40:43], s49 offen offset:{i*1024}")
e("A_skip3:")
e("  s_waitcnt lgkmcnt(0)")
e("  s_barrier")
e("  s_mov_b64 exec, s[44:45]")
e("  s_cbranch_execz A_skip4")
for i in range(4):
    e(f"  ds_read_b32 v{34+i}, v{26+i} offset:1024")
e("  s_waitcnt lgkmcnt(0)")
for i in range(4):
    e(f"  v_add_lshl_u32 v{34+i}, v{34+i}, v{30+i}, 3")
    e(f"  ds_write_b64 v{34+i}, v[{18+2*i}:{19+2*i}] offset:2048")
e("A_skip4:")
e("  s_mov_b64 exec, -1")
e("  s_waitcnt lgkmcnt(0)")
e("  s_barrier")
e("  ds_read_b128 v[8:11], v1 offset:2048")
e(f"  ds_read_b128 v[12:15], v1 offset:{2048+16384}")
e("  v_add_u32 v2, 16384, v1")
e("  s_waitcnt lgkmcnt(1)")
e("  buffer_store_dwordx4 v[8:11], v1, s[36:39], 0 offen")
e("  s_waitcnt lgkmcnt(0)")
e("  buffer_store_dwordx4 v[12:15], v2, s[36:39], 0 offen")
e("  s_endpgm")

e("A_gemm:")
e("  v_lshrrev_b32 v1, 6, v0")
e("  s_nop 0")
e("  v_readfirstlane_b32 s22, v1")
e("  s_waitcnt lgkmcnt(0)")
e("  s_lshr_b32 s23, s22, 2")
e("  s_add_u32 s24, s16, 8192")
e("  s_addc_u32 s25, s17, 0")
e("  s_cmp_eq_u32 s23, 1")
e("  s_cselect_b32 s24, s14, s24")
e("  s_cselect_b32 s25, s15, s25")
e("  s_cmp_eq_u32 s23, 2")
e("  s_cselect_b32 s24, s16, s24")
e("  s_cselect_b32 s25, s17, s25")
e("  s_cmp_eq_u32 s23, 3")
e("  s_cselect_b32 s24, s12, s24")
e("  s_cselect_b32 s25, s13, s25")
e("  s_mov_b32 s26, 8192")
e("  s_mov_b32 s27, 0x20000")
srd(28, 4, 5, N*128)
srd(32, 20, 21, N*256, QH_OFF)
srd(36, 20, 21, N*256, P_OFF)
srd(40, 20, 21, N*256, U_OFF)
e(f"  s_sub_u32 s44, s2, {NW}")
e("  s_lshl_b32 s44, s44, 8")
e("  s_lshl_b32 s45, s22, 4")
e("  s_add_u32 s44, s44, s45")
e("  v_and_b32 v1, 255, v0")
e("  v_lshlrev_b32 v2, 5, v1")
e("  buffer_load_dwordx4 v[8:11], v2, s[24:27], 0 offen")
e("  buffer_load_dwordx4 v[12:15], v2, s[24:27], 0 offen offset:16")
e("  v_and_b32 v3, 15, v0")
e("  v_bfe_u32 v4, v0, 4, 2")
e("  v_add_u32 v5, s44, v3")
e("  v_lshlrev_b32 v5, 7, v5")
e("  v_lshl_add_u32 v5, v4, 4, v5")
e("  buffer_load_dwordx4 v[16:19], v5, s[28:31], 0 offen")
e("  buffer_load_dwordx4 v[20:23], v5, s[28:31], 0 offen offset:64")
e("  v_and_b32 v6, 3, v1")
e("  v_lshlrev_b32 v6, 4, v6")
e("  s_lshl_b32 s45, s23, 6")
e("  v_add_u32 v6, s45, v6")
e("  v_mul_u32_u24 v6, 144, v6")
e("  v_lshrrev_b32 v7, 2, v1")
e("  v_lshl_add_u32 v6, v7, 1, v6")
e("  s_waitcnt vmcnt(2)")
for i in range(8):
    e(f"  ds_write_b16 v6, v{8+i} offset:{(2*i)*144}")
    e(f"  ds_write_b16_d16_hi v6, v{8+i} offset:{(2*i+1)*144}")
e("  v_mul_u32_u24 v6, 144, v3")
e("  v_lshl_add_u32 v6, v4, 4, v6")
e("  v_lshl_add_u32 v7, v4, 2, s44")
e("  v_lshlrev_b32 v7, 8, v7")
e("  v_lshl_add_u32 v7, v3, 2, v7")
e(f"  s_mov_b32 s46, 0x{NLOG2E:08x}")
e("  s_waitcnt vmcnt(0) lgkmcnt(0)")
e("  s_barrier")
for j in range(4):
    for half in range(2):
        t0 = j + 8*half
        t1 = t0 + 4
        e(f"  ds_read_b128 v[24:27], v6 offset:{t0*2304}")
        e(f"  ds_read_b128 v[28:31], v6 offset:{t0*2304+64}")
        e(f"  ds_read_b128 v[32:35], v6 offset:{t1*2304}")
        e(f"  ds_read_b128 v[36:39], v6 offset:{t1*2304+64}")
        e("  s_waitcnt lgkmcnt(0)")
        e("  v_mfma_f32_16x16x32_bf16 v[40:43], v[16:19], v[24:27], 0")
        e("  v_mfma_f32_16x16x32_bf16 v[44:47], v[16:19], v[32:35], 0")
        e("  v_mfma_f32_16x16x32_bf16 v[40:43], v[20:23], v[28:31], v[40:43]")
        e("  v_mfma_f32_16x16x32_bf16 v[44:47], v[20:23], v[36:39], v[44:47]")
        e("  s_nop 7")
        e("  s_nop 3")
        if half == 0:
            for i in range(4):
                e(f"  v_mul_f32 v{40+i}, s46, v{40+i}")
            for i in range(4):
                e(f"  v_cvt_pk_bf16_f32 v{48+i}, v{40+i}, v{44+i}")
            for i in range(4):
                e(f"  buffer_store_dword v{48+i}, v7, s[32:35], 0 offen offset:{i*256+j*64}")
        else:
            for i in range(4):
                e(f"  v_mul_f32 v{40+i}, s46, v{40+i}")
            for i in range(4):
                e(f"  buffer_store_dword v{40+i}, v7, s[36:39], 0 offen offset:{i*256+j*64}")
                e(f"  buffer_store_dword v{44+i}, v7, s[40:43], 0 offen offset:{i*256+j*64}")
        e("  s_waitcnt vmcnt(0)")
e("A_done:")
e("  s_endpgm")

L_CNT = 0
L_MAX = 256
L_TRASH = 260
L_P = 1024
L_AGG = 17408
L_LIST = 33792

e(".globl agg_kernel")
e(".p2align 8")
e(".type agg_kernel,@function")
e("agg_kernel:")
e(f"  s_cmp_ge_u32 s2, {NB}")
e("  s_cbranch_scc1 B_done")
e("  s_load_dwordx4 s[4:7], s[0:1], 48")
e("  s_load_dwordx2 s[8:9], s[0:1], 72")
e("  v_lshrrev_b32 v3, 6, v0")
e("  v_and_b32 v1, 15, v0")
e("  v_readfirstlane_b32 s40, v3")
e("  v_lshlrev_b32 v1, 4, v1")
e("  v_and_b32 v2, 63, v0")
e("  s_waitcnt lgkmcnt(0)")
srd(12, 8, 9, N*256, QH_OFF)
srd(16, 8, 9, NW*CH*8, REC_OFF)
srd(20, 8, 9, 256*1024, OFFS_OFF)
srd(24, 8, 9, N*256, P_OFF)
srd(28, 8, 9, N*256, U_OFF)
srd(32, 6, 7, N*128)
srd(36, 4, 5, 129*128)
e("  s_mov_b32 s48, 256")
e("  s_mov_b32 s49, 0xffff0000")
e(f"  s_mov_b32 s51, 0x{NLOG2E:08x}")
e("  v_lshrrev_b32 v3, 4, v0")
e("  v_lshlrev_b32 v83, 2, v3")
e("  s_lshl_b32 s50, s2, 10")
for r in range(4):
    e(f"  buffer_load_dword v{4+r}, v83, s[20:23], s50 offen offset:{r*256}")
e(f"  s_mul_i32 s52, s2, {NPB*256}")
e("  v_lshlrev_b32 v82, 4, v0")
e("  buffer_load_dwordx4 v[40:43], v82, s[24:27], s52 offen")
e("  buffer_load_dwordx4 v[8:11], v82, s[28:31], s52 offen")
e("  v_lshrrev_b32 v81, 1, v1")
e(f"  v_add_u32 v81, {128*128}, v81")
e("  buffer_load_dwordx2 v[44:45], v81, s[36:39], 0 offen")
e("  v_mov_b32 v48, 0")
e("  v_mov_b32 v49, 0")
e("  v_mov_b32 v50, 0")
e("  v_mov_b32 v51, 0")
e(f"  ds_write_b128 v82, v[48:51] offset:{L_AGG}")
e(f"  v_mov_b32 v52, {L_MAX}")
e("  ds_write_b32 v52, v48")
e("  s_waitcnt vmcnt(3)")
e("  v_and_b32 v52, 15, v0")
e(f"  v_cmp_gt_u32 vcc, {NW-192}, v3")
e("  s_nop 1")
e("  v_cndmask_b32 v7, 0, v7, vcc")
e(f"  s_mov_b32 s53, {CH*8}")
for r in range(4):
    e(f"  v_add_u32 v53, {64*r}, v3")
    e(f"  v_mul_lo_u32 v53, v53, s53")
    e(f"  v_and_b32 v54, 0xffff, v{4+r}")
    e(f"  v_add_u32 v54, v54, v52")
    e(f"  v_lshl_add_u32 v{92+r}, v54, 3, v53")
    e(f"  v_lshrrev_b32 v{4+r}, 16, v{4+r}")
    e(f"  v_sub_u32 v{96+r}, v{4+r}, v52")
e("  v_max_u32 v4, v4, v5")
e("  v_max_u32 v6, v6, v7")
e("  v_max_u32 v4, v4, v6")
e("  s_waitcnt vmcnt(0)")
e(f"  ds_write_b128 v82, v[40:43] offset:{L_P}")
e("  v_lshlrev_b32 v12, 16, v44")
e("  v_and_b32 v13, s49, v44")
e("  v_lshlrev_b32 v14, 16, v45")
e("  v_and_b32 v15, s49, v45")
for i in range(4):
    e(f"  v_mul_f32 v{12+i}, s51, v{12+i}")
e("  v_mov_b32 v84, 1.0")
e("  v_mov_b32 v85, 1.0")
e("  v_mov_b32 v86, 1")
e("  v_mov_b32 v87, 0x3f80")
e("  s_mov_b32 s41, 0")
e("B_layer:")
e("  v_mov_b32 v48, 0xffff")
e("  v_mov_b32 v49, 0xffff")
e("  v_mov_b32 v50, 0xffff")
e("  v_mov_b32 v51, 0xffff")
e(f"  ds_write_b128 v82, v[48:51] offset:{L_LIST}")
e(f"  ds_write_b128 v82, v[48:51] offset:{L_LIST+16384}")
e("  v_lshlrev_b32 v52, 2, v2")
e("  v_mov_b32 v53, 0")
e(f"  ds_write_b32 v52, v53 offset:{L_CNT}")
e("  s_lshl_b32 s50, s41, 3")
for r in range(4):
    for sub in range(2):
        k = r*2+sub
        e(f"  buffer_load_dwordx2 v[{16+2*k}:{17+2*k}], v{92+r}, s[16:19], s50 offen offset:{sub*128}")
e("  s_waitcnt lgkmcnt(0)")
e("  s_barrier")
e(f"  v_mov_b32 v52, {L_MAX}")
e("  ds_max_u32 v52, v4")
e("  s_add_u32 s52, s41, 16")
for r in range(4):
    for sub in range(2):
        k = r*2+sub
        e(f"  v_cmp_lt_i32 vcc, s{41 if sub==0 else 52}, v{96+r}")
        e(f"  s_waitcnt vmcnt({7-k})")
        e("  s_nop 0")
        e(f"  v_cndmask_b32 v{17+2*k}, 63, v{17+2*k}, vcc")
        e(f"  v_lshlrev_b32 v{17+2*k}, 2, v{17+2*k}")
        e(f"  ds_add_rtn_u32 v{32+k}, v{17+2*k}, v86 offset:{L_CNT}")
e("  s_waitcnt lgkmcnt(0)")
e("  s_barrier")
e("  v_lshlrev_b32 v52, 2, v2")
e(f"  ds_read_b32 v53, v52 offset:{L_CNT}")
e(f"  v_mov_b32 v52, {L_MAX}")
e("  ds_read_b32 v54, v52")
e(f"  v_cmp_gt_u32 vcc, {NPB}, v2")
e("  s_waitcnt lgkmcnt(0)")
e("  v_readfirstlane_b32 s42, v54")
e("  v_cndmask_b32 v53, 0, v53, vcc")
e("  v_add_u32 v53, 3, v53")
e("  v_lshrrev_b32 v53, 2, v53")
e("  v_mov_b32 v54, v53")
dpp_scan(54)
e("  v_sub_u32 v80, v54, v53")
e("  v_readlane_b32 s43, v54, 63")
for k in range(8):
    e(f"  ds_bpermute_b32 v{56+k}, v{17+2*k}, v80")
e(f"  v_mov_b32 v52, {L_TRASH - L_LIST}")
for k in range(8):
    e(f"  v_cmp_eq_u32 vcc, 252, v{17+2*k}")
    e(f"  s_waitcnt lgkmcnt({7-k})")
    e(f"  v_lshl_add_u32 v{56+k}, v{56+k}, 2, v{32+k}")
    e(f"  v_lshlrev_b32 v{56+k}, 2, v{56+k}")
    e(f"  v_cndmask_b32 v{56+k}, v{56+k}, v52, vcc")
    e(f"  ds_write_b32 v{56+k}, v{16+2*k} offset:{L_LIST}")
e("  s_waitcnt lgkmcnt(0)")
e("  s_barrier")
e("  s_mul_i32 s44, s43, s40")
e("  s_lshr_b32 s44, s44, 4")
e("  s_add_u32 s45, s40, 1")
e("  s_mul_i32 s45, s43, s45")
e("  s_lshr_b32 s45, s45, 4")
e("  s_cmp_eq_u32 s44, s45")
e("  s_cbranch_scc1 B_loop_end")
e("  v_bfe_u32 v81, v0, 4, 2")
e("  v_lshlrev_b32 v81, 2, v81")
e("  s_lshl_b32 s50, s44, 4")
e("  v_add_u32 v81, s50, v81")
R = [56, 60, 64, 68]
EV = [72, 74, 76, 78]
EN = [73, 75, 77, 79]
for k in range(4):
    e(f"  ds_read_b32 v{EN[k]}, v81 offset:{L_LIST + 16*k}")

def node_setup():
    e("  v_cmp_ge_u32 vcc, s44, v80")
    e("  s_nop 3")
    e("  s_bcnt1_i32_b64 s47, vcc")
    e("  v_readlane_b32 s46, v80, s47")
    e("  s_sub_u32 s47, s47, 1")
    e("  s_lshl_b32 s50, s47, 8")
    e("  v_add_u32 v83, s50, v1")
    e(f"  ds_read_b128 v[40:43], v83 offset:{L_P}")
    e("  s_min_u32 s46, s46, s45")
    e("  v_mov_b32 v44, 0")
    e("  v_mov_b32 v45, 0")
    e("  v_mov_b32 v46, 0")
    e("  v_mov_b32 v47, 0")
    e("  s_waitcnt lgkmcnt(0)")

def flush():
    for i in range(4):
        e(f"  ds_add_f32 v83, v{44+i} offset:{L_AGG + 4*i}")

node_setup()
for k in range(4):
    e(f"  v_mad_u32_u16 v82, v{EN[k]}, s48, v1")
    e(f"  v_and_b32 v{EV[k]}, s49, v{EN[k]}")
    e(f"  buffer_load_dwordx4 v[{R[k]}:{R[k]+3}], v82, s[12:15], 0 offen")
    e(f"  ds_read_b32 v{EN[k]}, v81 offset:{L_LIST + 16*k + 64}")

def compute(k):
    r = R[k]; ev = EV[k]
    e(f"  v_pk_fma_f32 v[48:49], v[{ev}:{ev+1}], v[12:13], v[40:41] op_sel_hi:[0,1,1]")
    e(f"  v_pk_fma_f32 v[50:51], v[{ev}:{ev+1}], v[14:15], v[42:43] op_sel_hi:[0,1,1]")
    if OPT['dot2']:
        for i in range(4):
            e(f"  v_dot2_f32_bf16 v{48+i}, v{r+i}, v87, v{48+i}")
    else:
        for i in range(4):
            e(f"  v_lshlrev_b32 v{52+i}, 16, v{r+i}")
        e("  v_pk_add_f32 v[48:49], v[48:49], v[52:53]")
        e("  v_pk_add_f32 v[50:51], v[50:51], v[54:55]")
    for i in range(4):
        e(f"  v_exp_f32 v{48+i}, v{48+i}")
    e("  v_pk_add_f32 v[48:49], v[48:49], v[84:85]")
    e("  v_pk_add_f32 v[50:51], v[50:51], v[84:85]")
    for i in range(4):
        e(f"  v_rcp_f32 v{48+i}, v{48+i}")
    if OPT['nomask']:
        e(f"  v_pk_fma_f32 v[44:45], v[{r}:{r+1}], v[48:49], v[44:45]")
        e(f"  v_pk_fma_f32 v[46:47], v[{r+2}:{r+3}], v[50:51], v[46:47]")
    else:
        for i in range(4):
            e(f"  v_and_b32 v{52+i}, s49, v{r+i}")
        e("  v_pk_fma_f32 v[44:45], v[52:53], v[48:49], v[44:45]")
        e("  v_pk_fma_f32 v[46:47], v[54:55], v[50:51], v[46:47]")

e("B_loop:")
for k in range(4):
    e("  s_cmp_eq_u32 s44, s46")
    e(f"  s_cbranch_scc1 B_switch{k}")
    e(f"B_cont{k}:")
    e("  s_waitcnt vmcnt(3)")
    compute(k)
    e("  s_waitcnt lgkmcnt(3)")
    e(f"  v_mad_u32_u16 v82, v{EN[k]}, s48, v1")
    e(f"  v_and_b32 v{EV[k]}, s49, v{EN[k]}")
    e(f"  buffer_load_dwordx4 v[{R[k]}:{R[k]+3}], v82, s[12:15], 0 offen")
    e(f"  ds_read_b32 v{EN[k]}, v81 offset:{L_LIST + 16*k + 128}")
    e("  s_add_u32 s44, s44, 1")
e("  v_add_u32 v81, 64, v81")
e("  s_branch B_loop")
for k in range(4):
    e(f"B_switch{k}:")
    flush()
    e("  s_cmp_eq_u32 s44, s45")
    e("  s_cbranch_scc1 B_loop_end")
    node_setup()
    e(f"  s_branch B_cont{k}")
e("B_loop_end:")
e("  s_waitcnt vmcnt(0) lgkmcnt(0)")
e("  s_barrier")
e("  v_lshlrev_b32 v82, 4, v0")
e("  s_add_u32 s41, s41, 32")
e("  s_cmp_lt_u32 s41, s42")
e("  s_cbranch_scc1 B_layer")
e(f"  v_cmp_gt_u32 vcc, {NPB*16}, v0")
e("  s_and_saveexec_b64 s[54:55], vcc")
e("  s_cbranch_execz B_done")
e(f"  ds_read_b128 v[40:43], v82 offset:{L_AGG}")
e("  s_waitcnt lgkmcnt(0)")
for i in range(4):
    e(f"  v_add_f32 v{40+i}, v{40+i}, v{8+i}")
for i in range(4):
    e(f"  v_mul_f32 v{44+i}, s51, v{40+i}")
for i in range(4):
    e(f"  v_exp_f32 v{44+i}, v{44+i}")
e("  s_nop 0")
for i in range(4):
    e(f"  v_add_f32 v{44+i}, 1.0, v{44+i}")
for i in range(4):
    e(f"  v_rcp_f32 v{44+i}, v{44+i}")
e("  s_nop 0")
for i in range(4):
    e(f"  v_mul_f32 v{40+i}, v{40+i}, v{44+i}")
e("  v_cvt_pk_bf16_f32 v48, v40, v41")
e("  v_cvt_pk_bf16_f32 v49, v42, v43")
e("  v_lshlrev_b32 v50, 3, v0")
e(f"  s_mul_i32 s52, s2, {NPB*128}")
e("  buffer_store_dwordx2 v[48:49], v50, s[32:35], s52 offen")
e("B_done:")
e("  s_endpgm")

e('.section .rodata,"a"')
for name, vg in (("prep_kernel", 64), ("agg_kernel", 104)):
    e(".p2align 6")
    e(f".amdhsa_kernel {name}")
    e(f"  .amdhsa_next_free_vgpr {vg}")
    e("  .amdhsa_next_free_sgpr 64")
    e(f"  .amdhsa_accum_offset {vg}")
    e("  .amdhsa_group_segment_fixed_size 0")
    e("  .amdhsa_kernarg_size 80")
    e("  .amdhsa_user_sgpr_count 2")
    e("  .amdhsa_user_sgpr_kernarg_segment_ptr 1")
    e("  .amdhsa_system_sgpr_workgroup_id_x 1")
    e(".end_amdhsa_kernel")

path = OPT.get('out', None)
open('standalone__edge_featured_mpnn_egc__graph.s', 'w').write('\n'.join(x for x in out if x is not None) + '\n')
```

```python
import sys

N = 12500
NB = 250
NPB = 50
CH = 3200
NW = 250
NG = 49
QH_OFF = 0
P_OFF = 0x400000
U_OFF = 0x800000
REC_OFF = 0xC00000
OFFS_OFF = 0x1400000
NLOG2E = 0xBFB8AA3B

OPT = dict(dot2=False, nomask=False, stamp=0, noload=0, nocomp=0, noflush=0, nodsr=0, w0=0, bslot=0)
OUTPATH = 'standalone__edge_featured_mpnn_egc__graph.s'
for a in sys.argv[1:]:
    if '=' in a:
        k, v = a.split('=')
        if k == 'out':
            OUTPATH = v
        else:
            OPT[k] = int(v)

out = []
def e(s=''):
    out.append(s)

HEADER = """; Kernarg layout for this problem (80 bytes, ptrs only, base s[0:1]):
;   offset   0: d_in[0] x  shape=(12500, 64) dtype=bfloat16
;   offset   8: d_in[1] e_attr  shape=(800000, 1) dtype=bfloat16
;   offset  16: d_in[2] src  shape=(800000,) dtype=int32
;   offset  24: d_in[3] dst  shape=(800000,) dtype=int32
;   offset  32: d_in[4] u_w  shape=(64, 64) dtype=bfloat16
;   offset  40: d_in[5] v_w  shape=(64, 64) dtype=bfloat16
;   offset  48: d_in[6] g_w  shape=(129, 64) dtype=bfloat16
;   offset  56: d_out     shape=(12500, 64) dtype=bfloat16
;   offset  64: d_debug   256 bytes
;   offset  72: d_ws      268435456 bytes workspace
; @launch kernel=prep_kernel grid=(%d,1,1) block=(1024,1,1) lds=40960
; @launch kernel=agg_kernel grid=(%d,1,1) block=(1024,1,1) lds=66560
.amdgcn_target "amdgcn-amd-amdhsa--gfx950"
.text""" % (NW + NG, NB)
e(HEADER)

def srd(d, lo, hi, size, add=None):
    if add is None:
        e(f"  s_mov_b32 s{d}, s{lo}")
        e(f"  s_mov_b32 s{d+1}, s{hi}")
    else:
        e(f"  s_add_u32 s{d}, s{lo}, {add}")
        e(f"  s_addc_u32 s{d+1}, s{hi}, 0")
    e(f"  s_mov_b32 s{d+2}, {size}")
    e(f"  s_mov_b32 s{d+3}, 0x20000")

KERN = ['A']
def stamp(idx):
    if not OPT['stamp']:
        return
    if (KERN[0] == 'A') != (OPT['stamp'] >= 3):
        return
    e(f"  s_memtime s[{72+2*idx}:{73+2*idx}]")
    e("  s_waitcnt lgkmcnt(0)")

def stamp_dump(nst, wg):
    if not OPT['stamp']:
        return
    if (KERN[0] == 'A') != (OPT['stamp'] >= 3):
        return
    lab = f"stamp_skip_{len(out)}"
    e("  s_mov_b64 exec, -1")
    e("  v_readfirstlane_b32 s98, v0")
    e("  s_nop 3")
    e(f"  s_cmp_eq_u32 s2, {wg}")
    e(f"  s_cbranch_scc0 {lab}")
    e("  s_cmp_eq_u32 s98, 0")
    e(f"  s_cbranch_scc0 {lab}")
    e("  s_load_dwordx2 s[92:93], s[0:1], 64")
    e("  s_waitcnt lgkmcnt(0)")
    e("  s_mov_b32 s94, 256")
    e("  s_mov_b32 s95, 0x20000")
    e("  v_mov_b32 v1, 0")
    for i in range(1, nst):
        e(f"  s_sub_u32 s98, s{72+2*i}, s72")
        e("  v_mov_b32 v2, s98")
        e(f"  buffer_store_dword v2, v1, s[92:95], 0 offen offset:{4*i}")
    e(f"{lab}:")

def dpp_scan(v):
    for sh in (1, 2, 4, 8):
        e("  s_nop 1")
        e(f"  v_add_u32_dpp v{v}, v{v}, v{v} row_shr:{sh} row_mask:0xf bank_mask:0xf bound_ctrl:0")
    e("  s_nop 1")
    e(f"  v_add_u32_dpp v{v}, v{v}, v{v} row_bcast:15 row_mask:0xa bank_mask:0xf")
    e("  s_nop 1")
    e(f"  v_add_u32_dpp v{v}, v{v}, v{v} row_bcast:31 row_mask:0xc bank_mask:0xf")
    e("  s_nop 1")

e(".globl prep_kernel")
e(".p2align 8")
e(".type prep_kernel,@function")
e("prep_kernel:")
e(f"  s_cmp_ge_u32 s2, {NW+NG}")
e("  s_cbranch_scc1 A_done")
stamp(0)
e("  s_load_dwordx16 s[4:19], s[0:1], 0")
e("  s_load_dwordx2 s[20:21], s[0:1], 72")
e(f"  s_cmp_ge_u32 s2, {NW}")
e("  s_cbranch_scc1 A_gemm")
e("  s_waitcnt lgkmcnt(0)")
e(f"  s_mul_i32 s22, s2, {CH*4}")
srd(24, 10, 11, CH*4, "s22")
srd(28, 8, 9, CH*4, "s22")
e(f"  s_mul_i32 s22, s2, {CH*2}")
srd(32, 6, 7, CH*2, "s22")
e(f"  s_mul_i32 s22, s2, {CH*8}")
e(f"  s_add_u32 s22, s22, {REC_OFF}")
srd(36, 20, 21, CH*8, "s22")
srd(40, 20, 21, 256*1024, OFFS_OFF)
e("  s_mov_b32 s48, 0xffff0000")
e("  s_lshl_b32 s49, s2, 2")
e("  v_lshlrev_b32 v1, 4, v0")
e("  v_lshlrev_b32 v2, 3, v0")
e("  v_lshlrev_b32 v3, 2, v0")
e("  v_mov_b32 v4, 0")
e("  v_mov_b32 v5, 1")
e("  ds_write_b32 v3, v4")
e(f"  v_cmp_gt_u32 vcc, {CH//4}, v0")
e("  s_mov_b64 s[44:45], vcc")
e("  s_mov_b64 exec, s[44:45]")
e("  s_cbranch_execz A_skip1")
e("  buffer_load_dwordx4 v[8:11], v1, s[24:27], 0 offen")
e("  buffer_load_dwordx4 v[12:15], v1, s[28:31], 0 offen")
e("  buffer_load_dwordx2 v[16:17], v2, s[32:35], 0 offen")
e("A_skip1:")
e("  s_mov_b64 exec, -1")
e("  s_waitcnt lgkmcnt(0)")
stamp(1)
e("  s_barrier")
stamp(2)
e("  s_mov_b64 exec, s[44:45]")
e("  s_cbranch_execz A_skip2")
e("  s_waitcnt vmcnt(0)")
for i in range(4):
    e(f"  v_mul_u32_u24 v{26+i}, 5243, v{8+i}")
    e(f"  v_lshrrev_b32 v{26+i}, 18, v{26+i}")
    e(f"  v_mul_u32_u24 v{34+i}, {NPB}, v{26+i}")
    e(f"  v_sub_u32 v{19+2*i}, v{8+i}, v{34+i}")
    e(f"  v_lshlrev_b32 v{26+i}, 2, v{26+i}")
    e(f"  ds_add_rtn_u32 v{30+i}, v{26+i}, v5")
e("  v_lshl_or_b32 v18, v16, 16, v12")
e("  v_and_or_b32 v20, v16, s48, v13")
e("  v_lshl_or_b32 v22, v17, 16, v14")
e("  v_and_or_b32 v24, v17, s48, v15")
e("A_skip2:")
e("  s_mov_b64 exec, -1")
e("  s_waitcnt lgkmcnt(0)")
stamp(3)
e("  s_barrier")
stamp(4)
e("  v_readfirstlane_b32 s50, v0")
e("  s_nop 3")
e("  s_cmp_ge_u32 s50, 64")
e("  s_cbranch_scc1 A_skip3")
e("  ds_read_b128 v[44:47], v1")
e("  s_waitcnt lgkmcnt(0)")
e("  v_add_u32 v49, v44, v45")
e("  v_add_u32 v50, v49, v46")
e("  v_add_u32 v51, v50, v47")
e("  v_mov_b32 v52, v51")
dpp_scan(52)
e("  v_sub_u32 v40, v52, v51")
e("  v_add_u32 v41, v40, v44")
e("  v_add_u32 v42, v40, v49")
e("  v_add_u32 v43, v40, v50")
e("  ds_write_b128 v1, v[40:43] offset:1024")
e("  v_lshlrev_b32 v53, 12, v0")
for i in range(4):
    e(f"  v_lshl_or_b32 v{44+i}, v{44+i}, 16, v{40+i}")
    e(f"  buffer_store_dword v{44+i}, v53, s[40:43], s49 offen offset:{i*1024}")
e("A_skip3:")
e("  s_waitcnt lgkmcnt(0)")
stamp(5)
e("  s_barrier")
stamp(6)
e("  s_mov_b64 exec, s[44:45]")
e("  s_cbranch_execz A_skip4")
for i in range(4):
    e(f"  ds_read_b32 v{34+i}, v{26+i} offset:1024")
e("  s_waitcnt lgkmcnt(0)")
for i in range(4):
    e(f"  v_add_lshl_u32 v{34+i}, v{34+i}, v{30+i}, 3")
    e(f"  ds_write_b64 v{34+i}, v[{18+2*i}:{19+2*i}] offset:2048")
e("A_skip4:")
e("  s_mov_b64 exec, -1")
e("  s_waitcnt lgkmcnt(0)")
stamp(7)
e("  s_barrier")
stamp(8)
e("  ds_read_b128 v[8:11], v1 offset:2048")
e(f"  ds_read_b128 v[12:15], v1 offset:{2048+16384}")
e("  v_add_u32 v2, 16384, v1")
e("  s_waitcnt lgkmcnt(1)")
e("  buffer_store_dwordx4 v[8:11], v1, s[36:39], 0 offen")
e("  s_waitcnt lgkmcnt(0)")
e("  buffer_store_dwordx4 v[12:15], v2, s[36:39], 0 offen")
if OPT['stamp'] == 3:
    e("  s_waitcnt vmcnt(0)")
    stamp(9)
    stamp_dump(10, 100)
e("  s_endpgm")

e("A_gemm:")
e("  v_lshrrev_b32 v1, 6, v0")
e("  s_nop 0")
e("  v_readfirstlane_b32 s22, v1")
e("  s_waitcnt lgkmcnt(0)")
e("  s_lshr_b32 s23, s22, 2")
e("  s_add_u32 s24, s16, 8192")
e("  s_addc_u32 s25, s17, 0")
e("  s_cmp_eq_u32 s23, 1")
e("  s_cselect_b32 s24, s14, s24")
e("  s_cselect_b32 s25, s15, s25")
e("  s_cmp_eq_u32 s23, 2")
e("  s_cselect_b32 s24, s16, s24")
e("  s_cselect_b32 s25, s17, s25")
e("  s_cmp_eq_u32 s23, 3")
e("  s_cselect_b32 s24, s12, s24")
e("  s_cselect_b32 s25, s13, s25")
e("  s_mov_b32 s26, 8192")
e("  s_mov_b32 s27, 0x20000")
srd(28, 4, 5, N*128)
srd(32, 20, 21, N*256, QH_OFF)
srd(36, 20, 21, N*256, P_OFF)
srd(40, 20, 21, N*256, U_OFF)
e(f"  s_sub_u32 s44, s2, {NW}")
e("  s_lshl_b32 s44, s44, 8")
e("  s_lshl_b32 s45, s22, 4")
e("  s_add_u32 s44, s44, s45")
e("  v_and_b32 v1, 255, v0")
e("  v_lshlrev_b32 v2, 5, v1")
e("  buffer_load_dwordx4 v[8:11], v2, s[24:27], 0 offen")
e("  buffer_load_dwordx4 v[12:15], v2, s[24:27], 0 offen offset:16")
e("  v_and_b32 v3, 15, v0")
e("  v_bfe_u32 v4, v0, 4, 2")
e("  v_add_u32 v5, s44, v3")
e("  v_lshlrev_b32 v5, 7, v5")
e("  v_lshl_add_u32 v5, v4, 4, v5")
e("  buffer_load_dwordx4 v[16:19], v5, s[28:31], 0 offen")
e("  buffer_load_dwordx4 v[20:23], v5, s[28:31], 0 offen offset:64")
e("  v_and_b32 v6, 3, v1")
e("  v_lshlrev_b32 v6, 4, v6")
e("  s_lshl_b32 s45, s23, 6")
e("  v_add_u32 v6, s45, v6")
e("  v_mul_u32_u24 v6, 144, v6")
e("  v_lshrrev_b32 v7, 2, v1")
e("  v_lshl_add_u32 v6, v7, 1, v6")
e("  s_waitcnt vmcnt(2)")
stamp(1)
for i in range(8):
    e(f"  ds_write_b16 v6, v{8+i} offset:{(2*i)*144}")
    e(f"  ds_write_b16_d16_hi v6, v{8+i} offset:{(2*i+1)*144}")
e("  v_mul_u32_u24 v6, 144, v3")
e("  v_lshl_add_u32 v6, v4, 4, v6")
e("  v_lshl_add_u32 v7, v4, 2, s44")
e("  v_lshlrev_b32 v7, 8, v7")
e("  v_lshl_add_u32 v7, v3, 2, v7")
e(f"  s_mov_b32 s46, 0x{NLOG2E:08x}")
e("  s_waitcnt vmcnt(0) lgkmcnt(0)")
stamp(2)
e("  s_barrier")
stamp(3)
for j in range(4):
    for half in range(2):
        t0 = j + 8*half
        t1 = t0 + 4
        e(f"  ds_read_b128 v[24:27], v6 offset:{t0*2304}")
        e(f"  ds_read_b128 v[28:31], v6 offset:{t0*2304+64}")
        e(f"  ds_read_b128 v[32:35], v6 offset:{t1*2304}")
        e(f"  ds_read_b128 v[36:39], v6 offset:{t1*2304+64}")
        e("  s_waitcnt lgkmcnt(0)")
        e("  v_mfma_f32_16x16x32_bf16 v[40:43], v[16:19], v[24:27], 0")
        e("  v_mfma_f32_16x16x32_bf16 v[44:47], v[16:19], v[32:35], 0")
        e("  v_mfma_f32_16x16x32_bf16 v[40:43], v[20:23], v[28:31], v[40:43]")
        e("  v_mfma_f32_16x16x32_bf16 v[44:47], v[20:23], v[36:39], v[44:47]")
        e("  s_nop 7")
        e("  s_nop 3")
        if half == 0:
            for i in range(4):
                e(f"  v_mul_f32 v{40+i}, s46, v{40+i}")
            for i in range(4):
                e(f"  v_cvt_pk_bf16_f32 v{48+i}, v{40+i}, v{44+i}")
            for i in range(4):
                e(f"  buffer_store_dword v{48+i}, v7, s[32:35], 0 offen offset:{i*256+j*64}")
        else:
            for i in range(4):
                e(f"  v_mul_f32 v{40+i}, s46, v{40+i}")
            for i in range(4):
                e(f"  buffer_store_dword v{40+i}, v7, s[36:39], 0 offen offset:{i*256+j*64}")
                e(f"  buffer_store_dword v{44+i}, v7, s[40:43], 0 offen offset:{i*256+j*64}")
if OPT['stamp'] == 4:
    stamp(4)
    e("  s_waitcnt vmcnt(0)")
    stamp(5)
    stamp_dump(6, 260)
e("A_done:")
e("  s_endpgm")

KERN[0] = 'B'
L_CNT = 0
L_MAX = 256
L_TRASH = 260
L_P = 1024
L_AGG = 17408
L_LIST = 33792

e(".globl agg_kernel")
e(".p2align 8")
e(".type agg_kernel,@function")
e("agg_kernel:")
e(f"  s_cmp_ge_u32 s2, {NB}")
e("  s_cbranch_scc1 B_done")
stamp(0)
e("  s_load_dwordx4 s[4:7], s[0:1], 48")
e("  s_load_dwordx2 s[8:9], s[0:1], 72")
e("  v_lshrrev_b32 v3, 6, v0")
e("  v_and_b32 v1, 15, v0")
e("  v_readfirstlane_b32 s40, v3")
e("  v_lshlrev_b32 v1, 4, v1")
e("  v_and_b32 v2, 63, v0")
e("  s_waitcnt lgkmcnt(0)")
srd(12, 8, 9, N*256, QH_OFF)
srd(16, 8, 9, NW*CH*8 if not OPT['bslot'] else 0x1800000, REC_OFF)
srd(20, 8, 9, 256*1024, OFFS_OFF)
srd(24, 8, 9, N*256, P_OFF)
srd(28, 8, 9, N*256, U_OFF)
srd(32, 6, 7, N*128)
srd(36, 4, 5, 129*128)
e("  s_mov_b32 s48, 256")
e("  s_mov_b32 s49, 0xffff0000")
e(f"  s_mov_b32 s51, 0x{NLOG2E:08x}")
e("  v_lshrrev_b32 v3, 4, v0")
e("  v_lshlrev_b32 v83, 2, v3")
e("  s_lshl_b32 s50, s2, 10")
for r in range(4):
    e(f"  buffer_load_dword v{4+r}, v83, s[20:23], s50 offen offset:{r*256}")
e(f"  s_mul_i32 s52, s2, {NPB*256}")
e("  v_lshlrev_b32 v82, 4, v0")
e("  buffer_load_dwordx4 v[40:43], v82, s[24:27], s52 offen")
e("  buffer_load_dwordx4 v[8:11], v82, s[28:31], s52 offen")
e("  v_lshrrev_b32 v81, 1, v1")
e(f"  v_add_u32 v81, {128*128}, v81")
e("  buffer_load_dwordx2 v[44:45], v81, s[36:39], 0 offen")
e("  v_mov_b32 v48, 0")
e("  v_mov_b32 v49, 0")
e("  v_mov_b32 v50, 0")
e("  v_mov_b32 v51, 0")
e(f"  ds_write_b128 v82, v[48:51] offset:{L_AGG}")
e(f"  v_mov_b32 v52, {L_MAX}")
e("  s_mov_b64 exec, 1")
e("  ds_write_b32 v52, v48")
e("  s_mov_b64 exec, -1")
e("  s_waitcnt vmcnt(3)")
stamp(8) if OPT['stamp']==2 else None
e("  v_and_b32 v52, 15, v0")
e(f"  v_cmp_gt_u32 vcc, {NW-192}, v3")
e("  s_nop 1")
e("  v_cndmask_b32 v7, 0, v7, vcc")
e(f"  s_mov_b32 s53, {CH*8 if not OPT['w0'] else OPT['w0']-1}")
for r in range(4):
    e(f"  v_add_u32 v53, {64*r}, v3")
    e(f"  v_mul_lo_u32 v53, v53, s53")
    e(f"  v_and_b32 v54, 0xffff, v{4+r}")
    if OPT['bslot']:
        e("  v_mov_b32 v54, 0")
    e(f"  v_add_u32 v54, v54, v52")
    e(f"  v_lshl_add_u32 v{92+r}, v54, 3, v53")
    e(f"  v_lshrrev_b32 v{4+r}, 16, v{4+r}")
    e(f"  v_sub_u32 v{96+r}, v{4+r}, v52")
e("  v_max_u32 v4, v4, v5")
e("  v_max_u32 v6, v6, v7")
e("  v_max_u32 v4, v4, v6")
e("  s_nop 1")
e("  v_max_u32_dpp v4, v4, v4 row_bcast:15 row_mask:0xa bank_mask:0xf")
e("  s_nop 1")
e("  v_max_u32_dpp v4, v4, v4 row_bcast:31 row_mask:0xc bank_mask:0xf")
e("  s_nop 1")
e("  v_readlane_b32 s54, v4, 63")
e("  s_nop 3")
e("  v_mov_b32 v4, s54")
e("  s_waitcnt vmcnt(0)")
stamp(9) if OPT['stamp']==2 else None
e(f"  ds_write_b128 v82, v[40:43] offset:{L_P}")
e("  v_lshlrev_b32 v12, 16, v44")
e("  v_and_b32 v13, s49, v44")
e("  v_lshlrev_b32 v14, 16, v45")
e("  v_and_b32 v15, s49, v45")
for i in range(4):
    e(f"  v_mul_f32 v{12+i}, s51, v{12+i}")
e("  v_mov_b32 v84, 1.0")
e("  v_mov_b32 v85, 1.0")
e("  v_mov_b32 v86, 1")
e("  v_mov_b32 v87, 0x3f80")
e("  s_mov_b32 s41, 0")
e("B_layer:")
e("  v_mov_b32 v48, 0xffff")
e("  v_mov_b32 v49, 0xffff")
e("  v_mov_b32 v50, 0xffff")
e("  v_mov_b32 v51, 0xffff")
e(f"  ds_write_b128 v82, v[48:51] offset:{L_LIST}")
e(f"  ds_write_b128 v82, v[48:51] offset:{L_LIST+16384}")
e("  v_lshlrev_b32 v52, 2, v2")
e("  v_mov_b32 v53, 0")
e(f"  ds_write_b32 v52, v53 offset:{L_CNT}")
e("  s_lshl_b32 s50, s41, 3")
e("  s_add_u32 s52, s41, 16")
for r in range(4):
    for sub in range(2):
        k = r*2+sub
        e(f"  v_cmp_lt_i32 s[{56+2*k}:{57+2*k}], s{41 if sub==0 else 52}, v{96+r}")
e("  s_nop 3")
for r in range(4):
    for sub in range(2):
        k = r*2+sub
        e(f"  s_mov_b64 exec, s[{56+2*k}:{57+2*k}]")
        e(f"  buffer_load_dwordx2 v[{16+2*k}:{17+2*k}], v{92+r}, s[16:19], s50 offen offset:{sub*128}")
e("  s_mov_b64 exec, -1")
e("  s_waitcnt lgkmcnt(0)")
stamp(1)
e("  s_barrier")
stamp(2)
e(f"  v_mov_b32 v52, {L_MAX}")
e("  s_mov_b64 exec, 1")
e("  ds_max_u32 v52, v4")
e("  s_mov_b64 exec, -1")
for k in range(8):
    e(f"  s_waitcnt vmcnt({7-k})")
    e(f"  v_lshlrev_b32 v{17+2*k}, 2, v{17+2*k}")
    e(f"  s_mov_b64 exec, s[{56+2*k}:{57+2*k}]")
    e(f"  ds_add_rtn_u32 v{32+k}, v{17+2*k}, v86 offset:{L_CNT}")
    e("  s_mov_b64 exec, -1")
e("  s_waitcnt lgkmcnt(0)")
stamp(3)
e("  s_barrier")
stamp(4)
e("  v_lshlrev_b32 v52, 2, v2")
e(f"  ds_read_b32 v53, v52 offset:{L_CNT}")
e(f"  v_mov_b32 v52, {L_MAX}")
e("  ds_read_b32 v54, v52")
e(f"  v_cmp_gt_u32 vcc, {NPB}, v2")
e("  s_waitcnt lgkmcnt(0)")
e("  v_readfirstlane_b32 s42, v54")
e("  v_cndmask_b32 v53, 0, v53, vcc")
e("  v_add_u32 v53, 3, v53")
e("  v_lshrrev_b32 v53, 2, v53")
e("  v_mov_b32 v54, v53")
dpp_scan(54)
e("  v_sub_u32 v80, v54, v53")
e("  v_readlane_b32 s43, v54, 63")
for k in range(8):
    e(f"  ds_bpermute_b32 v{56+k}, v{17+2*k}, v80")
e("  s_waitcnt lgkmcnt(0)")
for k in range(8):
    e(f"  v_lshl_add_u32 v{56+k}, v{56+k}, 2, v{32+k}")
    e(f"  v_lshlrev_b32 v{56+k}, 2, v{56+k}")
    e(f"  s_mov_b64 exec, s[{56+2*k}:{57+2*k}]")
    e(f"  ds_write_b32 v{56+k}, v{16+2*k} offset:{L_LIST}")
    e("  s_mov_b64 exec, -1")
e("  s_waitcnt lgkmcnt(0)")
stamp(5)
e("  s_barrier")
stamp(6)
e("  s_mul_i32 s44, s43, s40")
e("  s_lshr_b32 s44, s44, 4")
e("  s_add_u32 s45, s40, 1")
e("  s_mul_i32 s45, s43, s45")
e("  s_lshr_b32 s45, s45, 4")
e("  s_cmp_eq_u32 s44, s45")
e("  s_cbranch_scc1 B_loop_end")
e("  v_bfe_u32 v81, v0, 4, 2")
e("  v_lshlrev_b32 v81, 2, v81")
e("  v_mov_b32 v88, v81")
e("  s_lshl_b32 s50, s44, 4")
e("  v_add_u32 v81, s50, v81")
R = [56, 60, 64, 68]
EV = [72, 74, 76, 78]
EN = [73, 75, 77, 79]
for k in range(4):
    e(f"  ds_read_b32 v{EN[k]}, v81 offset:{L_LIST + 16*k}")

def node_setup():
    e("  v_cmp_ge_u32 vcc, s44, v80")
    e("  s_nop 3")
    e("  s_bcnt1_i32_b64 s47, vcc")
    e("  v_readlane_b32 s46, v80, s47")
    e("  s_sub_u32 s47, s47, 1")
    e("  s_lshl_b32 s50, s47, 8")
    e("  v_add_u32 v83, s50, v1")
    e(f"  ds_read_b128 v[40:43], v83 offset:{L_P}")
    e("  s_min_u32 s46, s46, s45")
    e("  v_mov_b32 v44, 0")
    e("  v_mov_b32 v45, 0")
    e("  v_mov_b32 v46, 0")
    e("  v_mov_b32 v47, 0")
    e("  s_waitcnt lgkmcnt(0)")

def flush():
    e("  s_nop 1")
    e("  v_permlane32_swap_b32 v44, v46")
    e("  v_permlane32_swap_b32 v45, v47")
    e("  s_nop 1")
    e("  v_add_f32 v44, v44, v46")
    e("  v_add_f32 v45, v45, v47")
    e("  s_nop 1")
    e("  v_permlane16_swap_b32 v44, v45")
    e("  s_nop 1")
    e("  v_add_f32 v44, v44, v45")
    e("  v_add_u32 v83, v83, v88")
    if not OPT['noflush']:
        e(f"  ds_add_f32 v83, v44 offset:{L_AGG}")

node_setup()
for k in range(4):
    e(f"  v_mad_u32_u16 v82, v{EN[k]}, s48, v1")
    e(f"  v_and_b32 v{EV[k]}, s49, v{EN[k]}")
    e(f"  buffer_load_dwordx4 v[{R[k]}:{R[k]+3}], v82, s[12:15], 0 offen")
    e(f"  ds_read_b32 v{EN[k]}, v81 offset:{L_LIST + 16*k + 64}")

def compute(k):
    r = R[k]; ev = EV[k]
    e(f"  v_pk_fma_f32 v[48:49], v[{ev}:{ev+1}], v[12:13], v[40:41] op_sel_hi:[0,1,1]")
    e(f"  v_pk_fma_f32 v[50:51], v[{ev}:{ev+1}], v[14:15], v[42:43] op_sel_hi:[0,1,1]")
    if OPT['dot2']:
        for i in range(4):
            e(f"  v_dot2_f32_bf16 v{48+i}, v{r+i}, v87, v{48+i}")
    else:
        for i in range(4):
            e(f"  v_lshlrev_b32 v{52+i}, 16, v{r+i}")
        e("  v_pk_add_f32 v[48:49], v[48:49], v[52:53]")
        e("  v_pk_add_f32 v[50:51], v[50:51], v[54:55]")
    for i in range(4):
        e(f"  v_exp_f32 v{48+i}, v{48+i}")
    e("  v_pk_add_f32 v[48:49], v[48:49], v[84:85]")
    e("  v_pk_add_f32 v[50:51], v[50:51], v[84:85]")
    for i in range(4):
        e(f"  v_rcp_f32 v{48+i}, v{48+i}")
    if OPT['nomask']:
        e(f"  v_pk_fma_f32 v[44:45], v[{r}:{r+1}], v[48:49], v[44:45]")
        e(f"  v_pk_fma_f32 v[46:47], v[{r+2}:{r+3}], v[50:51], v[46:47]")
    else:
        for i in range(4):
            e(f"  v_and_b32 v{52+i}, s49, v{r+i}")
        e("  v_pk_fma_f32 v[44:45], v[52:53], v[48:49], v[44:45]")
        e("  v_pk_fma_f32 v[46:47], v[54:55], v[50:51], v[46:47]")

e("B_loop:")
for k in range(4):
    e("  s_cmp_eq_u32 s44, s46")
    e(f"  s_cbranch_scc1 B_switch{k}")
    e(f"B_cont{k}:")
    e("  s_waitcnt vmcnt(3)")
    if not OPT['nocomp']:
        compute(k)
    else:
        e(f"  v_add_f32 v44, v44, v{R[k]}")
    e("  s_waitcnt lgkmcnt(3)")
    e(f"  v_mad_u32_u16 v82, v{EN[k]}, s48, v1")
    e(f"  v_and_b32 v{EV[k]}, s49, v{EN[k]}")
    if not OPT['noload']:
        e(f"  buffer_load_dwordx4 v[{R[k]}:{R[k]+3}], v82, s[12:15], 0 offen")
    if not OPT['nodsr']:
        e(f"  ds_read_b32 v{EN[k]}, v81 offset:{L_LIST + 16*k + 128}")
    e("  s_add_u32 s44, s44, 1")
e("  v_add_u32 v81, 64, v81")
e("  s_branch B_loop")
for k in range(4):
    e(f"B_switch{k}:")
    flush()
    e("  s_cmp_eq_u32 s44, s45")
    e("  s_cbranch_scc1 B_loop_end")
    node_setup()
    e(f"  s_branch B_cont{k}")
e("B_loop_end:")
e("  s_waitcnt vmcnt(0) lgkmcnt(0)")
stamp(7)
e("  s_barrier")
stamp(8) if OPT['stamp']!=2 else None
e("  v_lshlrev_b32 v82, 4, v0")
e("  s_add_u32 s41, s41, 32")
e("  s_cmp_lt_u32 s41, s42")
e("  s_cbranch_scc1 B_layer")
e(f"  v_cmp_gt_u32 vcc, {NPB*16}, v0")
e("  s_and_saveexec_b64 s[54:55], vcc")
e("  s_cbranch_execz B_epi_end")
e(f"  ds_read_b128 v[40:43], v82 offset:{L_AGG}")
e("  s_waitcnt lgkmcnt(0)")
for i in range(4):
    e(f"  v_add_f32 v{40+i}, v{40+i}, v{8+i}")
for i in range(4):
    e(f"  v_mul_f32 v{44+i}, s51, v{40+i}")
for i in range(4):
    e(f"  v_exp_f32 v{44+i}, v{44+i}")
e("  s_nop 0")
for i in range(4):
    e(f"  v_add_f32 v{44+i}, 1.0, v{44+i}")
for i in range(4):
    e(f"  v_rcp_f32 v{44+i}, v{44+i}")
e("  s_nop 0")
for i in range(4):
    e(f"  v_mul_f32 v{40+i}, v{40+i}, v{44+i}")
e("  v_cvt_pk_bf16_f32 v48, v40, v41")
e("  v_cvt_pk_bf16_f32 v49, v42, v43")
e("  v_lshlrev_b32 v50, 3, v0")
e(f"  s_mul_i32 s52, s2, {NPB*128}")
e("  buffer_store_dwordx2 v[48:49], v50, s[32:35], s52 offen")
e("B_epi_end:")
e("  s_waitcnt vmcnt(0)") if OPT['stamp'] else None
stamp(9) if OPT['stamp']!=2 else None
stamp_dump(10, 100)
if OPT['stamp'] in (1, 2):
    e("  s_mov_b64 exec, -1")
    e("  s_cmp_eq_u32 s2, 100")
    e("  s_cbranch_scc0 B_done")
    e("  s_load_dwordx2 s[92:93], s[0:1], 64")
    e("  s_waitcnt lgkmcnt(0)")
    e("  s_mov_b32 s94, 4096")
    e("  s_mov_b32 s95, 0x20000")
    e("  s_lshl_b32 s98, s40, 4")
    e("  s_add_u32 s98, s98, 64")
    e("  v_mov_b32 v1, s98")
    for i, st in enumerate((0, 1, 3, 7) if OPT['stamp']!=2 else (0, 8, 9, 1)):
        e(f"  s_and_b32 s99, s{72+2*st}, 0xfffff")
        e(f"  v_mov_b32 v{4+i}, s99")
    e("  buffer_store_dwordx4 v[4:7], v1, s[92:95], 0 offen")
e("B_done:")
e("  s_endpgm")

e('.section .rodata,"a"')
for name, vg in (("prep_kernel", 64), ("agg_kernel", 104)):
    e(".p2align 6")
    e(f".amdhsa_kernel {name}")
    e(f"  .amdhsa_next_free_vgpr {vg}")
    e("  .amdhsa_next_free_sgpr 100")
    e(f"  .amdhsa_accum_offset {vg}")
    e("  .amdhsa_group_segment_fixed_size 0")
    e("  .amdhsa_kernarg_size 80")
    e("  .amdhsa_user_sgpr_count 2")
    e("  .amdhsa_user_sgpr_kernarg_segment_ptr 1")
    e("  .amdhsa_system_sgpr_workgroup_id_x 1")
    e(".end_amdhsa_kernel")

path = OPT.get('out', None)
open(OUTPATH, 'w').write('\n'.join(x for x in out if x is not None) + '\n')
```

```python
import sys

N = 12500
NB = 250
NPB = 50
CH = 3200
NW = 250
NG = 49
QH_OFF = 0
P_OFF = 0x400000
U_OFF = 0x800000
REC_OFF = 0xC00000
OFFS_OFF = 0x1400000
FR_OFF = 0x1500000
NLOG2E = 0xBFB8AA3B

OPT = dict(dot2=False, nomask=False, stamp=0, noload=0, nocomp=0, noflush=0, nodsr=0, prio=1, warm=0, emptyA=0, emptyB=0, w0=0, bslot=0)
OUTPATH = 'standalone__edge_featured_mpnn_egc__graph.s'
for a in sys.argv[1:]:
    if '=' in a:
        k, v = a.split('=')
        if k == 'out':
            OUTPATH = v
        else:
            OPT[k] = int(v)

out = []
import re
def e(s=''):
    if s.lstrip().startswith('buffer_'):
        m = re.search(r'offset:(\d+)', s)
        assert not m or int(m.group(1)) < 4096, s
    if s.lstrip().startswith('ds_'):
        m = re.search(r'offset:(\d+)', s)
        assert not m or int(m.group(1)) < 65536, s
    out.append(s)

HEADER = """; Kernarg layout for this problem (80 bytes, ptrs only, base s[0:1]):
;   offset   0: d_in[0] x  shape=(12500, 64) dtype=bfloat16
;   offset   8: d_in[1] e_attr  shape=(800000, 1) dtype=bfloat16
;   offset  16: d_in[2] src  shape=(800000,) dtype=int32
;   offset  24: d_in[3] dst  shape=(800000,) dtype=int32
;   offset  32: d_in[4] u_w  shape=(64, 64) dtype=bfloat16
;   offset  40: d_in[5] v_w  shape=(64, 64) dtype=bfloat16
;   offset  48: d_in[6] g_w  shape=(129, 64) dtype=bfloat16
;   offset  56: d_out     shape=(12500, 64) dtype=bfloat16
;   offset  64: d_debug   256 bytes
;   offset  72: d_ws      268435456 bytes workspace
; @launch kernel=prep_kernel grid=(%d,1,1) block=(1024,1,1) lds=40960
; @launch kernel=agg_kernel grid=(%d,1,1) block=(1024,1,1) lds=67584
.amdgcn_target "amdgcn-amd-amdhsa--gfx950"
.text""" % (NW + NG, NB)
e(HEADER)

def srd(d, lo, hi, size, add=None):
    if add is None:
        e(f"  s_mov_b32 s{d}, s{lo}")
        e(f"  s_mov_b32 s{d+1}, s{hi}")
    else:
        e(f"  s_add_u32 s{d}, s{lo}, {add}")
        e(f"  s_addc_u32 s{d+1}, s{hi}, 0")
    e(f"  s_mov_b32 s{d+2}, {size}")
    e(f"  s_mov_b32 s{d+3}, 0x20000")

KERN = ['A']
def stamp(idx):
    if not OPT['stamp']:
        return
    if (KERN[0] == 'A') != (OPT['stamp'] >= 3):
        return
    e(f"  s_memtime s[{72+2*idx}:{73+2*idx}]")
    e("  s_waitcnt lgkmcnt(0)")

def stamp_dump(nst, wg):
    if not OPT['stamp']:
        return
    if (KERN[0] == 'A') != (OPT['stamp'] >= 3):
        return
    lab = f"stamp_skip_{len(out)}"
    e("  s_mov_b64 exec, -1")
    e("  v_readfirstlane_b32 s98, v0")
    e("  s_nop 3")
    e(f"  s_cmp_eq_u32 s2, {wg}")
    e(f"  s_cbranch_scc0 {lab}")
    e("  s_cmp_eq_u32 s98, 0")
    e(f"  s_cbranch_scc0 {lab}")
    e("  s_load_dwordx2 s[92:93], s[0:1], 64")
    e("  s_waitcnt lgkmcnt(0)")
    e("  s_mov_b32 s94, 256")
    e("  s_mov_b32 s95, 0x20000")
    e("  v_mov_b32 v1, 0")
    for i in range(1, nst):
        e(f"  s_sub_u32 s98, s{72+2*i}, s72")
        e("  v_mov_b32 v2, s98")
        e(f"  buffer_store_dword v2, v1, s[92:95], 0 offen offset:{4*i}")
    e(f"{lab}:")

def dpp_scan(v):
    for sh in (1, 2, 4, 8):
        e("  s_nop 1")
        e(f"  v_add_u32_dpp v{v}, v{v}, v{v} row_shr:{sh} row_mask:0xf bank_mask:0xf bound_ctrl:0")
    e("  s_nop 1")
    e(f"  v_add_u32_dpp v{v}, v{v}, v{v} row_bcast:15 row_mask:0xa bank_mask:0xf")
    e("  s_nop 1")
    e(f"  v_add_u32_dpp v{v}, v{v}, v{v} row_bcast:31 row_mask:0xc bank_mask:0xf")
    e("  s_nop 1")

e(".globl prep_kernel")
e(".p2align 8")
e(".type prep_kernel,@function")
e("prep_kernel:")
if OPT['emptyA']:
    e("  s_endpgm")
e(f"  s_cmp_ge_u32 s2, {NW+NG}")
e("  s_cbranch_scc1 A_done")
stamp(0)
e("  s_load_dwordx16 s[4:19], s[0:1], 0")
e("  s_load_dwordx2 s[20:21], s[0:1], 72")
e(f"  s_cmp_ge_u32 s2, {NW}")
e("  s_cbranch_scc1 A_gemm")
e("  s_waitcnt lgkmcnt(0)")
e(f"  s_mul_i32 s22, s2, {CH*4}")
srd(24, 10, 11, CH*4, "s22")
srd(28, 8, 9, CH*4, "s22")
e(f"  s_mul_i32 s22, s2, {CH*2}")
srd(32, 6, 7, CH*2, "s22")
e(f"  s_mul_i32 s22, s2, {CH*8}")
e(f"  s_add_u32 s22, s22, {REC_OFF}")
srd(36, 20, 21, CH*8, "s22")
srd(40, 20, 21, 256*1024, OFFS_OFF)
e("  s_mov_b32 s48, 0xffff0000")
e("  s_and_b32 s49, s2, 63")
e("  s_lshl_b32 s49, s49, 4")
e("  s_lshr_b32 s50, s2, 6")
e("  s_lshl_b32 s50, s50, 2")
e("  s_add_u32 s49, s49, s50")
e("  v_lshlrev_b32 v1, 4, v0")
e("  v_lshlrev_b32 v2, 3, v0")
e("  v_lshlrev_b32 v3, 2, v0")
e("  v_mov_b32 v4, 0")
e("  v_mov_b32 v5, 1")
e("  ds_write_b32 v3, v4")
e(f"  v_cmp_gt_u32 vcc, {CH//4}, v0")
e("  s_mov_b64 s[44:45], vcc")
e("  s_mov_b64 exec, s[44:45]")
e("  s_cbranch_execz A_skip1")
e("  buffer_load_dwordx4 v[8:11], v1, s[24:27], 0 offen")
e("  buffer_load_dwordx4 v[12:15], v1, s[28:31], 0 offen")
e("  buffer_load_dwordx2 v[16:17], v2, s[32:35], 0 offen")
e("A_skip1:")
e("  s_mov_b64 exec, -1")
e("  s_waitcnt lgkmcnt(0)")
stamp(1)
e("  s_barrier")
stamp(2)
e("  s_mov_b64 exec, s[44:45]")
e("  s_cbranch_execz A_skip2")
e("  s_waitcnt vmcnt(0)")
for i in range(4):
    e(f"  v_mul_u32_u24 v{26+i}, 5243, v{8+i}")
    e(f"  v_lshrrev_b32 v{26+i}, 18, v{26+i}")
    e(f"  v_mul_u32_u24 v{34+i}, {NPB}, v{26+i}")
    e(f"  v_sub_u32 v{19+2*i}, v{8+i}, v{34+i}")
    e(f"  v_lshlrev_b32 v{26+i}, 2, v{26+i}")
    e(f"  ds_add_rtn_u32 v{30+i}, v{26+i}, v5")
e("  v_lshl_or_b32 v18, v16, 16, v12")
e("  v_and_or_b32 v20, v16, s48, v13")
e("  v_lshl_or_b32 v22, v17, 16, v14")
e("  v_and_or_b32 v24, v17, s48, v15")
e("A_skip2:")
e("  s_mov_b64 exec, -1")
e("  s_waitcnt lgkmcnt(0)")
stamp(3)
e("  s_barrier")
stamp(4)
e("  v_readfirstlane_b32 s50, v0")
e("  s_nop 3")
e("  s_cmp_ge_u32 s50, 64")
e("  s_cbranch_scc1 A_skip3")
e("  ds_read_b128 v[44:47], v1")
e("  s_waitcnt lgkmcnt(0)")
e("  v_add_u32 v49, v44, v45")
e("  v_add_u32 v50, v49, v46")
e("  v_add_u32 v51, v50, v47")
e("  v_mov_b32 v52, v51")
dpp_scan(52)
e("  v_sub_u32 v40, v52, v51")
e("  v_add_u32 v41, v40, v44")
e("  v_add_u32 v42, v40, v49")
e("  v_add_u32 v43, v40, v50")
e("  ds_write_b128 v1, v[40:43] offset:1024")
e("  v_lshlrev_b32 v53, 12, v0")
for i in range(4):
    e(f"  v_lshl_or_b32 v{44+i}, v{44+i}, 16, v{40+i}")
    e(f"  buffer_store_dword v{44+i}, v53, s[40:43], s49 offen offset:{i*1024}")
e("A_skip3:")
e("  s_waitcnt lgkmcnt(0)")
stamp(5)
e("  s_barrier")
stamp(6)
e("  s_mov_b64 exec, s[44:45]")
e("  s_cbranch_execz A_skip4")
for i in range(4):
    e(f"  ds_read_b32 v{34+i}, v{26+i} offset:1024")
e("  s_waitcnt lgkmcnt(0)")
for i in range(4):
    e(f"  v_add_lshl_u32 v{34+i}, v{34+i}, v{30+i}, 3")
    e(f"  ds_write_b64 v{34+i}, v[{18+2*i}:{19+2*i}] offset:2048")
e("A_skip4:")
e("  s_mov_b64 exec, -1")
e("  s_waitcnt lgkmcnt(0)")
stamp(7)
e("  s_barrier")
stamp(8)
e("  ds_read_b128 v[8:11], v1 offset:2048")
e(f"  ds_read_b128 v[12:15], v1 offset:{2048+16384}")
e("  v_add_u32 v2, 16384, v1")
e("  s_waitcnt lgkmcnt(1)")
e("  buffer_store_dwordx4 v[8:11], v1, s[36:39], 0 offen")
e("  s_waitcnt lgkmcnt(0)")
e("  buffer_store_dwordx4 v[12:15], v2, s[36:39], 0 offen")
if OPT['stamp'] == 3:
    e("  s_waitcnt vmcnt(0)")
    stamp(9)
    stamp_dump(10, 100)
e("  s_endpgm")

e("A_gemm:")
e("  v_lshrrev_b32 v1, 6, v0")
e("  s_nop 0")
e("  v_readfirstlane_b32 s22, v1")
e("  s_waitcnt lgkmcnt(0)")
e("  s_lshr_b32 s23, s22, 2")
e("  s_add_u32 s24, s16, 8192")
e("  s_addc_u32 s25, s17, 0")
e("  s_cmp_eq_u32 s23, 1")
e("  s_cselect_b32 s24, s14, s24")
e("  s_cselect_b32 s25, s15, s25")
e("  s_cmp_eq_u32 s23, 2")
e("  s_cselect_b32 s24, s16, s24")
e("  s_cselect_b32 s25, s17, s25")
e("  s_cmp_eq_u32 s23, 3")
e("  s_cselect_b32 s24, s12, s24")
e("  s_cselect_b32 s25, s13, s25")
e("  s_mov_b32 s26, 8192")
e("  s_mov_b32 s27, 0x20000")
srd(28, 4, 5, N*128)
srd(32, 20, 21, N*256, QH_OFF)
srd(36, 20, 21, N*256, P_OFF)
srd(40, 20, 21, N*256, U_OFF)
e(f"  s_sub_u32 s44, s2, {NW}")
e("  s_lshl_b32 s44, s44, 8")
e("  s_lshl_b32 s45, s22, 4")
e("  s_add_u32 s44, s44, s45")
e("  v_and_b32 v1, 255, v0")
e("  v_lshlrev_b32 v2, 5, v1")
e("  buffer_load_dwordx4 v[8:11], v2, s[24:27], 0 offen")
e("  buffer_load_dwordx4 v[12:15], v2, s[24:27], 0 offen offset:16")
e("  v_and_b32 v3, 15, v0")
e("  v_bfe_u32 v4, v0, 4, 2")
e("  v_add_u32 v5, s44, v3")
e("  v_lshlrev_b32 v5, 7, v5")
e("  v_lshl_add_u32 v5, v4, 4, v5")
e("  buffer_load_dwordx4 v[16:19], v5, s[28:31], 0 offen")
e("  buffer_load_dwordx4 v[20:23], v5, s[28:31], 0 offen offset:64")
e("  v_and_b32 v6, 3, v1")
e("  v_lshlrev_b32 v6, 4, v6")
e("  s_lshl_b32 s45, s23, 6")
e("  v_add_u32 v6, s45, v6")
e("  v_mul_u32_u24 v6, 144, v6")
e("  v_lshrrev_b32 v7, 2, v1")
e("  v_lshl_add_u32 v6, v7, 1, v6")
e("  s_waitcnt vmcnt(2)")
stamp(1)
for i in range(8):
    e(f"  ds_write_b16 v6, v{8+i} offset:{(2*i)*144}")
    e(f"  ds_write_b16_d16_hi v6, v{8+i} offset:{(2*i+1)*144}")
e("  v_mul_u32_u24 v6, 144, v3")
e("  v_lshl_add_u32 v6, v4, 4, v6")
e("  v_lshl_add_u32 v7, v4, 2, s44")
e("  v_lshlrev_b32 v7, 8, v7")
e("  v_lshl_add_u32 v7, v3, 2, v7")
e(f"  s_mov_b32 s46, 0x{NLOG2E:08x}")
e("  s_waitcnt vmcnt(0) lgkmcnt(0)")
stamp(2)
e("  s_barrier")
stamp(3)
e(f"  s_cmp_lg_u32 s2, {NW}")
e("  s_cbranch_scc1 A_nofrag")
e("  s_lshr_b32 s47, s22, 1")
e("  s_add_u32 s47, s47, 8")
e("  s_mul_i32 s47, s47, 2304")
e("  s_and_b32 s48, s22, 1")
e("  s_lshl_b32 s48, s48, 6")
e("  s_add_u32 s47, s47, s48")
e("  v_add_u32 v24, s47, v6")
e("  ds_read_b128 v[28:31], v24")
srd(48, 20, 21, 16384, FR_OFF)
e("  v_lshlrev_b32 v24, 4, v0")
e("  s_waitcnt lgkmcnt(0)")
e("  buffer_store_dwordx4 v[28:31], v24, s[48:51], 0 offen")
e("  s_nop 1")
e("A_nofrag:")
for j in range(4):
    for half in range(1):
        t0 = j + 8*half
        t1 = t0 + 4
        e(f"  ds_read_b128 v[24:27], v6 offset:{t0*2304}")
        e(f"  ds_read_b128 v[28:31], v6 offset:{t0*2304+64}")
        e(f"  ds_read_b128 v[32:35], v6 offset:{t1*2304}")
        e(f"  ds_read_b128 v[36:39], v6 offset:{t1*2304+64}")
        e("  s_waitcnt lgkmcnt(0)")
        e("  v_mfma_f32_16x16x32_bf16 v[40:43], v[16:19], v[24:27], 0")
        e("  v_mfma_f32_16x16x32_bf16 v[44:47], v[16:19], v[32:35], 0")
        e("  v_mfma_f32_16x16x32_bf16 v[40:43], v[20:23], v[28:31], v[40:43]")
        e("  v_mfma_f32_16x16x32_bf16 v[44:47], v[20:23], v[36:39], v[44:47]")
        e("  s_nop 7")
        e("  s_nop 3")
        if half == 0:
            for i in range(4):
                e(f"  v_mul_f32 v{40+i}, s46, v{40+i}")
            for i in range(4):
                e(f"  v_cvt_pk_bf16_f32 v{48+i}, v{40+i}, v{44+i}")
            if OPT['nomask']:
                for i in range(4):
                    e(f"  v_and_b32 v{48+i}, 0xffff, v{48+i}")
                    e(f"  v_and_b32 v{40+i}, 0x7fffffff, v{44+i}")
                    e(f"  v_sub_u32 v{40+i}, v{40+i}, v{48+i}")
                    e(f"  v_add_u32 v{40+i}, 0x8000, v{40+i}")
                    e(f"  v_max_i32 v{40+i}, 0, v{40+i}")
                    e(f"  v_and_b32 v{40+i}, 0xffff0000, v{40+i}")
                    e(f"  v_and_b32 v{44+i}, 0x80000000, v{44+i}")
                    e(f"  v_or3_b32 v{48+i}, v{40+i}, v{44+i}, v{48+i}")
            for i in range(4):
                e(f"  buffer_store_dword v{48+i}, v7, s[32:35], 0 offen offset:{i*256+j*64}")
        else:
            for i in range(4):
                e(f"  v_mul_f32 v{40+i}, s46, v{40+i}")
            for i in range(4):
                e(f"  buffer_store_dword v{40+i}, v7, s[36:39], 0 offen offset:{i*256+j*64}")
                e(f"  buffer_store_dword v{44+i}, v7, s[40:43], 0 offen offset:{i*256+j*64}")
if OPT['stamp'] == 4:
    stamp(4)
    e("  s_waitcnt vmcnt(0)")
    stamp(5)
    stamp_dump(6, 260)
e("A_done:")
e("  s_endpgm")

KERN[0] = 'B'
L_CNT = 0
L_MAX = 256
L_P = 1024
L_AGG = 17408
L_LIST = 33792
LDS_B = L_LIST + 32768 + 1024

V_G4, V_START, V_EADDR, V_T16, V_RB, V_REM = 88, 89, 90, 91, 92, 96
EV = [100 + 2*k for k in range(8)]
IDX = [116 + 2*m for m in range(4)]
V_FL, V_ONE, V_ONES = 124, 125, 126
R = [56 + 4*k for k in range(8)]

e(".globl agg_kernel")
e(".p2align 8")
e(".type agg_kernel,@function")
e("agg_kernel:")
if OPT['emptyB']:
    e("  s_endpgm")
e(f"  s_cmp_ge_u32 s2, {NB}")
e("  s_cbranch_scc1 B_done")
stamp(0)
e("  s_load_dwordx4 s[4:7], s[0:1], 48")
e("  s_load_dwordx2 s[8:9], s[0:1], 72")
e("  s_load_dwordx2 s[10:11], s[0:1], 0")
e("  s_load_dwordx2 s[46:47], s[0:1], 32")
e("  s_and_b32 s3, s2, 7")
e("  s_lshr_b32 s2, s2, 3")
e("  s_mov_b32 s96, s2")
e("  s_mul_i32 s44, s3, 31")
e("  s_min_u32 s3, s3, 2")
e("  s_add_u32 s2, s2, s44")
e("  s_add_u32 s2, s2, s3")
e("  v_lshrrev_b32 v3, 6, v0")
e("  v_and_b32 v1, 15, v0")
e("  v_readfirstlane_b32 s40, v3")
e("  v_lshlrev_b32 v1, 4, v1")
e("  v_and_b32 v2, 63, v0")
e("  s_waitcnt lgkmcnt(0)")
srd(20, 8, 9, 256*1024, OFFS_OFF)
e("  v_lshrrev_b32 v3, 4, v0")
e(f"  v_lshlrev_b32 v{V_FL}, 4, v3")
e("  s_lshl_b32 s50, s2, 10")
e(f"  buffer_load_dwordx4 v[4:7], v{V_FL}, s[20:23], s50 offen")
e(f"  s_add_u32 s12, s8, {QH_OFF}")
e("  s_addc_u32 s13, s9, 0")
e("  s_or_b32 s13, s13, 0x01000000")
e(f"  s_mov_b32 s14, {N}")
e("  s_mov_b32 s15, 0x20000")
srd(16, 8, 9, NW*CH*8, REC_OFF)
srd(24, 10, 11, N*128)
srd(28, 8, 9, 16384, FR_OFF)
srd(32, 6, 7, N*128)
srd(36, 4, 5, 129*128)
e("  s_and_b32 s55, s40, 7")
e("  s_mov_b32 s48, 0x3f80")
e("  s_mov_b32 s49, 0xffff0000")
e(f"  s_mov_b32 s51, 0x{NLOG2E:08x}")
e(f"  v_lshlrev_b32 v{V_T16}, 4, v0")
e(f"  v_bfe_u32 v{V_G4}, v0, 4, 2")
e("  v_and_b32 v52, 15, v0")
def lds_init(first):
    e("  v_mov_b32 v48, 0xffff")
    e("  v_mov_b32 v49, 0xffff")
    e("  v_mov_b32 v50, 0xffff")
    e("  v_mov_b32 v51, 0xffff")
    e(f"  ds_write_b128 v{V_T16}, v[48:51] offset:{L_LIST}")
    e(f"  ds_write_b128 v{V_T16}, v[48:51] offset:{L_LIST+16384}")
    e("  v_lshlrev_b32 v53, 4, v2")
    e(f"  v_add_u32 v53, {L_LIST+32768}, v53")
    e("  ds_write_b128 v53, v[48:51]")
    e("  v_lshlrev_b32 v53, 2, v2")
    e("  v_mov_b32 v54, 0")
    e(f"  ds_write_b32 v53, v54 offset:{L_CNT}")
    if first:
        e(f"  v_mov_b32 v53, {L_MAX}")
        e("  s_mov_b64 exec, 1")
        e("  ds_write_b32 v53, v54")
        e("  s_mov_b64 exec, -1")

lds_init(True)
for k in range(8):
    e(f"  v_mov_b32 v{EV[k]}, 0")
for m in range(4):
    e(f"  v_mov_b32 v{IDX[m]+1}, v1")
e(f"  v_mov_b32 v{V_ONES}, 1.0")
e(f"  v_mov_b32 v{V_ONES+1}, 1.0")
e(f"  v_mov_b32 v{V_ONE}, 1")
e(f"  s_mov_b32 s45, {CH*8}")
e("  v_lshlrev_b32 v55, 1, v52")
e("  s_waitcnt lgkmcnt(0)")
stamp(1)
e("  s_barrier")
stamp(2)
e(f"  v_cmp_gt_u32 vcc, {NW-192}, v3")
e("  s_waitcnt vmcnt(0)")
e("  v_cndmask_b32 v7, 0, v7, vcc")
for r in range(4):
    e(f"  v_add_u32 v53, {64*r}, v3")
    e(f"  v_mul_lo_u32 v53, v53, s45")
    e(f"  v_and_b32 v54, 0xffff, v{4+r}")
    e(f"  v_add_u32 v54, v54, v55")
    e(f"  v_lshl_add_u32 v{V_RB+r}, v54, 3, v53")
    e(f"  v_lshrrev_b32 v{4+r}, 16, v{4+r}")
    e(f"  v_sub_u32 v{V_REM+r}, v{4+r}, v55")
e("  s_mov_b32 s41, 0")

def rec_loads():
    e("  s_lshl_b32 s50, s41, 3")
    e("  s_add_u32 s52, s41, 1")
    for r in range(4):
        for sub in range(2):
            k = r*2+sub
            e(f"  v_cmp_lt_i32 s[{56+2*k}:{57+2*k}], s{41 if sub==0 else 52}, v{V_REM+r}")
    e("  s_nop 3")
    for r in range(4):
        e(f"  s_or_b64 exec, s[{56+4*r}:{57+4*r}], 1")
        e(f"  buffer_load_dwordx4 v[{16+4*r}:{19+4*r}], v{V_RB+r}, s[16:19], s50 offen")
    e("  s_mov_b64 exec, -1")

rec_loads()
e("  v_max_u32 v4, v4, v5")
e("  v_max_u32 v6, v6, v7")
e("  v_max_u32 v4, v4, v6")
e("  s_nop 1")
e("  v_max_u32_dpp v4, v4, v4 row_bcast:15 row_mask:0xa bank_mask:0xf")
e("  s_nop 1")
e("  v_max_u32_dpp v4, v4, v4 row_bcast:31 row_mask:0xc bank_mask:0xf")
e("  s_nop 1")
e("  v_readlane_b32 s44, v4, 63")
e("  s_nop 3")
e("  v_mov_b32 v4, s44")
e(f"  v_mov_b32 v53, {L_MAX}")
e("  s_mov_b64 exec, 1")
e("  ds_max_u32 v53, v4")
e("  s_mov_b64 exec, -1")
e("  s_cmp_lt_u32 s55, 4")
e(f"  s_mov_b32 s52, {L_AGG}")
e(f"  s_cselect_b32 s52, {L_P}, s52")
e("  s_cselect_b32 s97, s51, 1.0")
e("  s_lshr_b32 s53, s40, 3")
e("  s_lshl_b32 s53, s53, 13")
e("  s_add_u32 s52, s52, s53")
e("  s_and_b32 s54, s55, 3")
e("  s_lshl_b32 s54, s54, 6")
e("  s_add_u32 s52, s52, s54")
e(f"  v_lshlrev_b32 v5, 10, v{V_G4}")
e("  v_lshl_add_u32 v5, v52, 2, v5")
e("  v_add_u32 v5, s52, v5")
e("  s_waitcnt vmcnt(0)")
e("  s_branch B_count")
e("B_layer:")
lds_init(False)
e("  s_waitcnt lgkmcnt(0)")
e("  s_barrier")
rec_loads()
e("  s_waitcnt vmcnt(0)")
e("B_count:")
for k in range(8):
    e(f"  v_lshlrev_b32 v{17+2*k}, 2, v{17+2*k}")
    e(f"  s_mov_b64 exec, s[{56+2*k}:{57+2*k}]")
    e(f"  ds_add_rtn_u32 v{32+k}, v{17+2*k}, v{V_ONE} offset:{L_CNT}")
    e("  s_mov_b64 exec, -1")
e("  s_cmp_lg_u32 s41, 0")
e("  s_cbranch_scc1 B_noabc")
e(f"  v_lshrrev_b32 v{V_EADDR}, 1, v1")
e(f"  v_add_u32 v{V_EADDR}, {128*128}, v{V_EADDR}")
e(f"  buffer_load_dwordx2 v[44:45], v{V_EADDR}, s[36:39], 0 offen")
e(f"  s_mul_i32 s52, s2, {NPB}")
e("  s_lshr_b32 s53, s40, 3")
e("  s_lshl_b32 s53, s53, 5")
e("  s_add_u32 s52, s52, s53")
e("  v_and_b32 v52, 15, v0")
e("  v_add_u32 v53, s52, v52")
e("  v_lshlrev_b32 v53, 7, v53")
e(f"  v_lshl_add_u32 v53, v{V_G4}, 4, v53")
e("  buffer_load_dwordx4 v[56:59], v53, s[24:27], 0 offen")
e("  buffer_load_dwordx4 v[60:63], v53, s[24:27], 0 offen offset:64")
e("  buffer_load_dwordx4 v[64:67], v53, s[24:27], 0 offen offset:2048")
e("  buffer_load_dwordx4 v[68:71], v53, s[24:27], 0 offen offset:2112")
e("  v_lshlrev_b32 v54, 4, v2")
e("  s_lshl_b32 s54, s55, 11")
e("  buffer_load_dwordx4 v[8:11], v54, s[28:31], s54 offen")
e("  buffer_load_dwordx4 v[12:15], v54, s[28:31], s54 offen offset:1024")
e(f"  v_lshlrev_b32 v{V_G4}, 2, v{V_G4}")
e("B_noabc:")
e("  s_waitcnt lgkmcnt(0)")
stamp(3)
e("  s_barrier")
stamp(4)
e("  v_lshlrev_b32 v52, 2, v2")
e(f"  ds_read_b32 v53, v52 offset:{L_CNT}")
e(f"  v_mov_b32 v52, {L_MAX}")
e("  ds_read_b32 v54, v52")
e(f"  v_cmp_gt_u32 vcc, {NPB}, v2")
e("  s_waitcnt lgkmcnt(0)")
e("  v_readfirstlane_b32 s42, v54")
e("  v_cndmask_b32 v53, 0, v53, vcc")
e("  v_add_u32 v53, 3, v53")
e("  v_lshrrev_b32 v53, 2, v53")
e("  v_mov_b32 v54, v53")
dpp_scan(54)
e(f"  v_sub_u32 v{V_START}, v54, v53")
e("  v_readlane_b32 s43, v54, 63")
for k in range(8):
    e(f"  ds_bpermute_b32 v{72+k}, v{17+2*k}, v{V_START}")
e("  s_waitcnt lgkmcnt(0)")
for k in range(8):
    e(f"  v_lshl_add_u32 v{72+k}, v{72+k}, 2, v{32+k}")
    e(f"  v_lshlrev_b32 v{72+k}, 2, v{72+k}")
    e(f"  s_mov_b64 exec, s[{56+2*k}:{57+2*k}]")
    e(f"  ds_write_b32 v{72+k}, v{16+2*k} offset:{L_LIST}")
    e("  s_mov_b64 exec, -1")
e("  s_cmp_lg_u32 s41, 0")
e("  s_cbranch_scc1 B_nomfma")
e("  s_waitcnt vmcnt(0)")
e("  v_mfma_f32_16x16x32_bf16 v[80:83], v[56:59], v[8:11], 0")
e("  v_mfma_f32_16x16x32_bf16 v[84:87], v[64:67], v[8:11], 0")
e("  v_mfma_f32_16x16x32_bf16 v[80:83], v[60:63], v[12:15], v[80:83]")
e("  v_mfma_f32_16x16x32_bf16 v[84:87], v[68:71], v[12:15], v[84:87]")
e("  s_nop 7")
e("  s_nop 1")
for i in range(8):
    e(f"  v_mul_f32 v{80+i}, s97, v{80+i}")
for i in range(4):
    e(f"  ds_write_b32 v5, v{80+i} offset:{i*256}")
    e(f"  ds_write_b32 v5, v{84+i} offset:{4096+i*256}")
e("  v_lshlrev_b32 v12, 16, v44")
e("  v_and_b32 v13, s49, v44")
e("  v_lshlrev_b32 v14, 16, v45")
e("  v_and_b32 v15, s49, v45")
for i in range(4):
    e(f"  v_mul_f32 v{12+i}, s51, v{12+i}")
e("B_nomfma:")
e("  s_waitcnt lgkmcnt(0)")
stamp(5)
e("  s_barrier")
stamp(6)
e("  s_mul_i32 s44, s43, s40")
e("  s_lshr_b32 s44, s44, 4")
e("  s_add_u32 s45, s40, 1")
e("  s_mul_i32 s45, s43, s45")
e("  s_lshr_b32 s45, s45, 4")
e("  s_cmp_eq_u32 s44, s45")
e("  s_cbranch_scc1 B_loop_end")
e("  s_lshl_b32 s50, s44, 4")
e(f"  v_add_u32 v{V_EADDR}, s50, v{V_G4}")
if OPT['prio']:
    e("  s_sub_u32 s50, s45, s44")
    e("  s_lshr_b32 s50, s50, 2")
    e("  s_add_u32 s52, s44, s50")
    e("  s_add_u32 s53, s52, s50")
    e("  s_add_u32 s54, s53, s50")
    e("  s_setprio 3")

def node_setup():
    e(f"  v_cmp_ge_u32 vcc, s44, v{V_START}")
    e("  s_nop 3")
    e("  s_bcnt1_i32_b64 s47, vcc")
    e(f"  v_readlane_b32 s46, v{V_START}, s47")
    e("  s_sub_u32 s47, s47, 1")
    e("  s_lshl_b32 s50, s47, 8")
    e(f"  v_add_u32 v{V_FL}, s50, v1")
    e(f"  ds_read_b128 v[40:43], v{V_FL} offset:{L_P}")
    e("  s_min_u32 s46, s46, s45")
    e("  v_mov_b32 v44, 0")
    e("  v_mov_b32 v45, 0")
    e("  v_mov_b32 v46, 0")
    e("  v_mov_b32 v47, 0")
    e("  s_waitcnt lgkmcnt(0)")

def flush():
    e("  s_nop 1")
    e("  v_permlane32_swap_b32 v44, v46")
    e("  v_permlane32_swap_b32 v45, v47")
    e("  s_nop 1")
    e("  v_add_f32 v44, v44, v46")
    e("  v_add_f32 v45, v45, v47")
    e("  s_nop 1")
    e("  v_permlane16_swap_b32 v44, v45")
    e("  s_nop 1")
    e("  v_add_f32 v44, v44, v45")
    e(f"  v_add_u32 v{V_FL}, v{V_FL}, v{V_G4}")
    e(f"  ds_add_f32 v{V_FL}, v44 offset:{L_AGG}")

def row_load(k, m):
    if not OPT['noload']:
        e(f"  buffer_load_dwordx4 v[{R[k]}:{R[k]+3}], v[{IDX[m]}:{IDX[m]+1}], s[12:15], 0 idxen offen")

for half in range(2):
    for m in range(4):
        e(f"  ds_read_u16 v{IDX[m]}, v{V_EADDR} offset:{L_LIST + 16*(4*half+m)}")
    e("  s_waitcnt lgkmcnt(0)")
    for m in range(4):
        row_load(4*half+m, m)
for m in range(4):
    e(f"  ds_read_u16 v{IDX[m]}, v{V_EADDR} offset:{L_LIST + 16*(8+m)}")
    e(f"  ds_read_u16_d16_hi v{EV[m]}, v{V_EADDR} offset:{L_LIST + 16*m + 2}")
node_setup()

def compute(k):
    r = R[k]; ev = EV[k]
    e(f"  v_pk_fma_f32 v[48:49], v[{ev}:{ev+1}], v[12:13], v[40:41] op_sel_hi:[0,1,1]")
    e(f"  v_pk_fma_f32 v[50:51], v[{ev}:{ev+1}], v[14:15], v[42:43] op_sel_hi:[0,1,1]")
    if OPT['dot2']:
        for i in range(4):
            e(f"  v_dot2_f32_bf16 v{48+i}, v{r+i}, s48, v{48+i}")
    else:
        for i in range(4):
            e(f"  v_lshlrev_b32 v{52+i}, 16, v{r+i}")
        e("  v_pk_add_f32 v[48:49], v[48:49], v[52:53]")
        e("  v_pk_add_f32 v[50:51], v[50:51], v[54:55]")
    for i in range(4):
        e(f"  v_exp_f32 v{48+i}, v{48+i}")
    e(f"  v_pk_add_f32 v[48:49], v[48:49], v[{V_ONES}:{V_ONES+1}]")
    e(f"  v_pk_add_f32 v[50:51], v[50:51], v[{V_ONES}:{V_ONES+1}]")
    for i in range(4):
        e(f"  v_rcp_f32 v{48+i}, v{48+i}")
    if OPT['nomask']:
        e("  s_nop 0")
        e(f"  v_pk_fma_f32 v[44:45], v[{r}:{r+1}], v[48:49], v[44:45]")
        e(f"  v_pk_fma_f32 v[46:47], v[{r+2}:{r+3}], v[50:51], v[46:47]")
    else:
        for i in range(4):
            e(f"  v_and_b32 v{52+i}, s49, v{r+i}")
        e("  v_pk_fma_f32 v[44:45], v[52:53], v[48:49], v[44:45]")
        e("  v_pk_fma_f32 v[46:47], v[54:55], v[50:51], v[46:47]")

e("B_loop:")
if OPT['prio']:
    e("  s_cmp_ge_u32 s44, s52")
    e("  s_cbranch_scc0 B_prio_done")
    e("  s_setprio 2")
    e("  s_cmp_ge_u32 s44, s53")
    e("  s_cbranch_scc0 B_prio_done")
    e("  s_setprio 1")
    e("  s_cmp_ge_u32 s44, s54")
    e("  s_cbranch_scc0 B_prio_done")
    e("  s_setprio 0")
    e("B_prio_done:")
for k in range(8):
    e("  s_cmp_eq_u32 s44, s46")
    e(f"  s_cbranch_scc1 B_switch{k}")
    e(f"B_cont{k}:")
    e("  s_waitcnt vmcnt(7) lgkmcnt(6)")
    if not OPT['nocomp']:
        compute(k)
    else:
        e(f"  v_add_f32 v44, v44, v{R[k]}")
    row_load(k, k % 4)
    e(f"  ds_read_u16 v{IDX[k%4]}, v{V_EADDR} offset:{L_LIST + 16*(k+12)}")
    e(f"  ds_read_u16_d16_hi v{EV[(k+4)%8]}, v{V_EADDR} offset:{L_LIST + 16*(k+4) + 2}")
    e("  s_add_u32 s44, s44, 1")
e(f"  v_add_u32 v{V_EADDR}, 128, v{V_EADDR}")
e("  s_branch B_loop")
for k in range(8):
    e(f"B_switch{k}:")
    flush()
    e("  s_cmp_eq_u32 s44, s45")
    e("  s_cbranch_scc1 B_loop_end")
    node_setup()
    e(f"  s_branch B_cont{k}")
e("B_loop_end:")
e("  s_setprio 0")
e("  s_waitcnt vmcnt(0) lgkmcnt(0)")
stamp(7) if OPT['stamp']!=2 else None
e("  s_barrier")
stamp(8) if OPT['stamp']!=2 else None
e("  s_add_u32 s41, s41, 32")
e("  s_cmp_lt_u32 s41, s42")
e("  s_cbranch_scc1 B_layer")
e(f"  v_cmp_gt_u32 vcc, {NPB*16}, v0")
e("  s_and_saveexec_b64 s[54:55], vcc")
e("  s_cbranch_execz B_epi_end")
e(f"  ds_read_b128 v[40:43], v{V_T16} offset:{L_AGG}")
e("  s_waitcnt lgkmcnt(0)")
for i in range(4):
    e(f"  v_mul_f32 v{44+i}, s51, v{40+i}")
for i in range(4):
    e(f"  v_exp_f32 v{44+i}, v{44+i}")
e("  s_nop 0")
for i in range(4):
    e(f"  v_add_f32 v{44+i}, 1.0, v{44+i}")
for i in range(4):
    e(f"  v_rcp_f32 v{44+i}, v{44+i}")
e("  s_nop 0")
for i in range(4):
    e(f"  v_mul_f32 v{40+i}, v{40+i}, v{44+i}")
e("  v_cvt_pk_bf16_f32 v48, v40, v41")
e("  v_cvt_pk_bf16_f32 v49, v42, v43")
e("  v_lshlrev_b32 v50, 3, v0")
e(f"  s_mul_i32 s52, s2, {NPB*128}")
e("  buffer_store_dwordx2 v[48:49], v50, s[32:35], s52 offen")
e("B_epi_end:")
if OPT['stamp'] in (1, 2):
    e("  s_waitcnt vmcnt(0)")
    stamp(9) if OPT['stamp']!=2 else None
    stamp_dump(10, 100)
    e("  s_mov_b64 exec, -1")
    e("  s_cmp_eq_u32 s2, 100")
    e("  s_cbranch_scc0 B_done")
    e("  s_load_dwordx2 s[92:93], s[0:1], 64")
    e("  s_waitcnt lgkmcnt(0)")
    e("  s_mov_b32 s94, 4096")
    e("  s_mov_b32 s95, 0x20000")
    e("  s_lshl_b32 s98, s40, 4")
    e("  s_add_u32 s98, s98, 64")
    e("  v_mov_b32 v1, s98")
    for i, st in enumerate((0, 1, 3, 7) if OPT['stamp']!=2 else (8, 9, 7, 1)):
        e(f"  s_sub_u32 s99, s{72+2*st}, s72")
        e(f"  v_mov_b32 v{4+i}, s99")
    e("  buffer_store_dwordx4 v[4:7], v1, s[92:95], 0 offen")
e("B_done:")
e("  s_endpgm")

e('.section .rodata,"a"')
for name, vg in (("prep_kernel", 64), ("agg_kernel", 128)):
    e(".p2align 6")
    e(f".amdhsa_kernel {name}")
    e(f"  .amdhsa_next_free_vgpr {vg}")
    e("  .amdhsa_next_free_sgpr 100")
    e(f"  .amdhsa_accum_offset {vg}")
    e("  .amdhsa_group_segment_fixed_size 0")
    e("  .amdhsa_kernarg_size 80")
    e("  .amdhsa_user_sgpr_count 2")
    e("  .amdhsa_user_sgpr_kernarg_segment_ptr 1")
    e("  .amdhsa_system_sgpr_workgroup_id_x 1")
    e(".end_amdhsa_kernel")

path = OPT.get('out', None)
open(OUTPATH, 'w').write('\n'.join(x for x in out if x is not None) + '\n')
```

```python
import sys

N = 12500
NB = 250
NPB = 50
CH = 3200
NW = 250
NG = 49
QH_OFF = 0
P_OFF = 0x400000
U_OFF = 0x800000
REC_OFF = 0xC00000
OFFS_OFF = 0x1400000
FR_OFF = 0x1500000
NLOG2E = 0xBFB8AA3B

OPT = dict(dot2=False, nomask=False, stamp=0, noload=0, nocomp=0, noflush=0, nodsr=0, rt=0, prio=1, warm=0, emptyA=0, emptyB=0, w0=0, bslot=0)
OUTPATH = 'standalone__edge_featured_mpnn_egc__graph.s'
for a in sys.argv[1:]:
    if '=' in a:
        k, v = a.split('=')
        if k == 'out':
            OUTPATH = v
        else:
            OPT[k] = int(v)

out = []
import re
def e(s=''):
    if s.lstrip().startswith('buffer_'):
        m = re.search(r'offset:(\d+)', s)
        assert not m or int(m.group(1)) < 4096, s
    if s.lstrip().startswith('ds_'):
        m = re.search(r'offset:(\d+)', s)
        assert not m or int(m.group(1)) < 65536, s
    out.append(s)

HEADER = """; Kernarg layout for this problem (80 bytes, ptrs only, base s[0:1]):
;   offset   0: d_in[0] x  shape=(12500, 64) dtype=bfloat16
;   offset   8: d_in[1] e_attr  shape=(800000, 1) dtype=bfloat16
;   offset  16: d_in[2] src  shape=(800000,) dtype=int32
;   offset  24: d_in[3] dst  shape=(800000,) dtype=int32
;   offset  32: d_in[4] u_w  shape=(64, 64) dtype=bfloat16
;   offset  40: d_in[5] v_w  shape=(64, 64) dtype=bfloat16
;   offset  48: d_in[6] g_w  shape=(129, 64) dtype=bfloat16
;   offset  56: d_out     shape=(12500, 64) dtype=bfloat16
;   offset  64: d_debug   256 bytes
;   offset  72: d_ws      268435456 bytes workspace
; @launch kernel=prep_kernel grid=(%d,1,1) block=(1024,1,1) lds=55296
; @launch kernel=agg_kernel grid=(%d,1,1) block=(1024,1,1) lds=83968
.amdgcn_target "amdgcn-amd-amdhsa--gfx950"
.text""" % (NW, NB)
e(HEADER)

def srd(d, lo, hi, size, add=None):
    if add is None:
        e(f"  s_mov_b32 s{d}, s{lo}")
        e(f"  s_mov_b32 s{d+1}, s{hi}")
    else:
        e(f"  s_add_u32 s{d}, s{lo}, {add}")
        e(f"  s_addc_u32 s{d+1}, s{hi}, 0")
    e(f"  s_mov_b32 s{d+2}, {size}")
    e(f"  s_mov_b32 s{d+3}, 0x20000")

KERN = ['A']
def stamp(idx):
    if not OPT['stamp']:
        return
    if (KERN[0] == 'A') != (OPT['stamp'] >= 3):
        return
    e(f"  s_memtime s[{72+2*idx}:{73+2*idx}]")
    e("  s_waitcnt lgkmcnt(0)")

def stamp_dump(nst, wg):
    if not OPT['stamp']:
        return
    if (KERN[0] == 'A') != (OPT['stamp'] >= 3):
        return
    lab = f"stamp_skip_{len(out)}"
    e("  s_mov_b64 exec, -1")
    e("  v_readfirstlane_b32 s98, v0")
    e("  s_nop 3")
    e(f"  s_cmp_eq_u32 s2, {wg}")
    e(f"  s_cbranch_scc0 {lab}")
    e("  s_cmp_eq_u32 s98, 0")
    e(f"  s_cbranch_scc0 {lab}")
    e("  s_load_dwordx2 s[92:93], s[0:1], 64")
    e("  s_waitcnt lgkmcnt(0)")
    e("  s_mov_b32 s94, 256")
    e("  s_mov_b32 s95, 0x20000")
    e("  v_mov_b32 v1, 0")
    for i in range(1, nst):
        e(f"  s_sub_u32 s98, s{72+2*i}, s72")
        e("  v_mov_b32 v2, s98")
        e(f"  buffer_store_dword v2, v1, s[92:95], 0 offen offset:{4*i}")
    e(f"{lab}:")

def dpp_scan(v):
    for sh in (1, 2, 4, 8):
        e("  s_nop 1")
        e(f"  v_add_u32_dpp v{v}, v{v}, v{v} row_shr:{sh} row_mask:0xf bank_mask:0xf bound_ctrl:0")
    e("  s_nop 1")
    e(f"  v_add_u32_dpp v{v}, v{v}, v{v} row_bcast:15 row_mask:0xa bank_mask:0xf")
    e("  s_nop 1")
    e(f"  v_add_u32_dpp v{v}, v{v}, v{v} row_bcast:31 row_mask:0xc bank_mask:0xf")
    e("  s_nop 1")

LW0 = 36864
LW1 = LW0 + 9216
LDS_A = LW1 + 9216

def rt_endA():
    if OPT['rt']:
        e("  s_waitcnt vmcnt(0)")
        e("  s_mov_b64 exec, -1")
        e("  s_memrealtime s[56:57]")
        e("  s_load_dwordx2 s[58:59], s[0:1], 72")
        e("  s_waitcnt lgkmcnt(0)")
        e("  s_add_u32 s52, s58, 0x2000000")
        e("  s_addc_u32 s53, s59, 0")
        e("  s_mov_b32 s54, 0x10000")
        e("  s_mov_b32 s55, 0x20000")
        e("  v_lshrrev_b32 v1, 6, v0")
        e("  v_lshlrev_b32 v1, 3, v1")
        e("  s_lshl_b32 s62, s2, 7")
        e("  v_add_u32 v1, s62, v1")
        e("  v_mov_b32 v2, s64")
        e("  v_mov_b32 v3, s56")
        e("  s_mov_b64 exec, 1")
        e("  buffer_store_dwordx2 v[2:3], v1, s[52:55], 0 offen")

e(".globl prep_kernel")
e(".p2align 8")
e(".type prep_kernel,@function")
e("prep_kernel:")
if OPT['emptyA']:
    e("  s_endpgm")
e(f"  s_cmp_ge_u32 s2, {NW}")
e("  s_cbranch_scc1 A_done")
if OPT['rt']:
    e("  s_memrealtime s[64:65]")
stamp(0)
e("  s_load_dwordx16 s[4:19], s[0:1], 0")
e("  s_load_dwordx2 s[20:21], s[0:1], 72")
e("  v_lshrrev_b32 v1, 6, v0")
e("  s_nop 0")
e("  v_readfirstlane_b32 s23, v1")
e("  s_nop 3")
e("  s_cmp_ge_u32 s23, 8")
e("  s_cbranch_scc1 A_gemm")
e("  s_cmp_eq_u32 s23, 7")
e("  s_cbranch_scc1 A_done")
D0, S0, E0, PR, AD, RK, BS = 8, 16, 24, 28, 44, 52, 60
e("  s_waitcnt lgkmcnt(0)")
e(f"  s_mul_i32 s22, s2, {CH*4}")
srd(24, 10, 11, CH*4, "s22")
srd(28, 8, 9, CH*4, "s22")
e(f"  s_mul_i32 s22, s2, {CH*2}")
srd(32, 6, 7, CH*2, "s22")
e("  v_lshlrev_b32 v1, 4, v0")
e("  v_lshlrev_b32 v2, 5, v0")
e(f"  v_cmp_gt_u32 vcc, {CH//8}, v0")
e("  s_mov_b64 s[44:45], vcc")
e("  s_mov_b64 exec, s[44:45]")
e(f"  buffer_load_dwordx4 v[{D0}:{D0+3}], v2, s[24:27], 0 offen")
e(f"  buffer_load_dwordx4 v[{D0+4}:{D0+7}], v2, s[24:27], 0 offen offset:16")
e(f"  buffer_load_dwordx4 v[{S0}:{S0+3}], v2, s[28:31], 0 offen")
e(f"  buffer_load_dwordx4 v[{S0+4}:{S0+7}], v2, s[28:31], 0 offen offset:16")
e(f"  buffer_load_dwordx4 v[{E0}:{E0+3}], v1, s[32:35], 0 offen")
e("  s_mov_b64 exec, -1")
e(f"  s_mul_i32 s22, s2, {CH*8}")
e(f"  s_add_u32 s22, s22, {REC_OFF}")
srd(36, 20, 21, CH*8, "s22")
srd(40, 20, 21, 256*1024, OFFS_OFF)
e("  s_mov_b32 s48, 0xffff0000")
e("  s_and_b32 s49, s2, 63")
e("  s_lshl_b32 s49, s49, 4")
e("  s_lshr_b32 s50, s2, 6")
e("  s_lshl_b32 s50, s50, 2")
e("  s_add_u32 s49, s49, s50")
e("  v_lshlrev_b32 v3, 2, v0")
e("  v_mov_b32 v4, 0")
e("  v_mov_b32 v5, 1")
e("  ds_write_b32 v3, v4")
e("  s_waitcnt lgkmcnt(0)")
stamp(1)
e("  s_barrier")
stamp(2)
e("  s_mov_b64 exec, s[44:45]")
e("  s_waitcnt vmcnt(3)")
for i in range(8):
    e(f"  v_mul_u32_u24 v{AD+i}, 5243, v{D0+i}")
    e(f"  v_lshrrev_b32 v{AD+i}, 18, v{AD+i}")
    e(f"  v_mul_u32_u24 v{BS+i}, {NPB}, v{AD+i}")
    e(f"  v_sub_u32 v{PR+1+2*i}, v{D0+i}, v{BS+i}")
    e(f"  v_lshlrev_b32 v{AD+i}, 2, v{AD+i}")
    e(f"  ds_add_rtn_u32 v{RK+i}, v{AD+i}, v5")
e("  s_mov_b64 exec, -1")
e("  s_waitcnt lgkmcnt(0)")
stamp(3)
e("  s_barrier")
stamp(4)
e("  s_cmp_lg_u32 s23, 0")
e("  s_cbranch_scc1 A_skip3")
e("  ds_read_b128 v[72:75], v1")
e("  s_waitcnt lgkmcnt(0)")
e("  v_add_u32 v77, v72, v73")
e("  v_add_u32 v78, v77, v74")
e("  v_add_u32 v79, v78, v75")
e("  v_mov_b32 v80, v79")
dpp_scan(80)
e("  v_sub_u32 v68, v80, v79")
e("  v_add_u32 v69, v68, v72")
e("  v_add_u32 v70, v68, v77")
e("  v_add_u32 v71, v68, v78")
e("  ds_write_b128 v1, v[68:71] offset:1024")
e("  v_lshlrev_b32 v81, 12, v0")
for i in range(4):
    e(f"  v_lshl_or_b32 v{72+i}, v{72+i}, 16, v{68+i}")
    e(f"  buffer_store_dword v{72+i}, v81, s[40:43], s49 offen offset:{i*1024}")
e("A_skip3:")
e("  s_waitcnt lgkmcnt(0)")
stamp(5)
e("  s_barrier")
stamp(6)
e("  s_mov_b64 exec, s[44:45]")
for i in range(8):
    e(f"  ds_read_b32 v{BS+i}, v{AD+i} offset:1024")
e("  s_waitcnt vmcnt(0)")
for i in range(4):
    e(f"  v_lshl_or_b32 v{PR+4*i}, v{E0+i}, 16, v{S0+2*i}")
    e(f"  v_and_or_b32 v{PR+4*i+2}, v{E0+i}, s48, v{S0+2*i+1}")
e("  s_waitcnt lgkmcnt(0)")
for i in range(8):
    e(f"  v_add_lshl_u32 v{BS+i}, v{BS+i}, v{RK+i}, 3")
    e(f"  ds_write_b64 v{BS+i}, v[{PR+2*i}:{PR+1+2*i}] offset:2048")
e("  s_mov_b64 exec, -1")
e("  s_waitcnt lgkmcnt(0)")
stamp(7)
e("  s_barrier")
stamp(8)
for i in range(4):
    e(f"  ds_read_b128 v[{8+4*i}:{11+4*i}], v1 offset:{2048+448*16*i}")
for i in range(4):
    e(f"  s_movk_i32 s50, {448*16*i}")
    e(f"  s_waitcnt lgkmcnt({3-i})")
    e(f"  buffer_store_dwordx4 v[{8+4*i}:{11+4*i}], v1, s[36:39], s50 offen")
if OPT['stamp'] == 3:
    e("  s_waitcnt vmcnt(0)")
    stamp(9)
    stamp_dump(10, 100)
rt_endA()
e("  s_endpgm")

e("A_gemm:")
e("  s_waitcnt lgkmcnt(0)")
e("  s_sub_u32 s23, s23, 8")
e("  s_add_u32 s24, s16, 8192")
e("  s_addc_u32 s25, s17, 0")
e("  s_mov_b32 s26, 8192")
e("  s_mov_b32 s27, 0x20000")
srd(36, 14, 15, 8192)
srd(28, 4, 5, N*128)
srd(32, 20, 21, N*256, QH_OFF)
e("  v_subrev_u32 v1, 512, v0")
e("  v_lshlrev_b32 v2, 4, v1")
e("  buffer_load_dwordx4 v[24:27], v2, s[24:27], 0 offen")
e("  buffer_load_dwordx4 v[28:31], v2, s[36:39], 0 offen")
e(f"  s_mul_i32 s44, s2, {NPB}")
e("  s_lshr_b32 s45, s23, 1")
e("  s_lshl_b32 s45, s45, 4")
e("  s_add_u32 s44, s44, s45")
e("  v_and_b32 v3, 15, v0")
e("  v_bfe_u32 v4, v0, 4, 2")
e("  v_add_u32 v5, s44, v3")
e("  v_lshlrev_b32 v5, 7, v5")
e("  v_lshl_add_u32 v5, v4, 4, v5")
e("  buffer_load_dwordx4 v[16:19], v5, s[28:31], 0 offen")
e("  buffer_load_dwordx4 v[20:23], v5, s[28:31], 0 offen offset:64")
e("  s_barrier")
e("  v_bfe_u32 v6, v0, 2, 2")
e("  v_lshl_add_u32 v6, v4, 3, v6")
e("  v_lshlrev_b32 v6, 7, v6")
e("  v_and_b32 v7, 3, v0")
e("  v_lshl_add_u32 v6, v7, 3, v6")
e("  s_and_b32 s45, s23, 1")
e("  s_lshl_b32 s47, s45, 6")
e("  v_add_u32 v6, s47, v6")
e("  v_lshl_add_u32 v7, v4, 2, s44")
e("  v_lshlrev_b32 v7, 8, v7")
e("  v_lshl_add_u32 v7, v3, 2, v7")
e("  s_lshl_b32 s47, s45, 7")
e("  v_add_u32 v7, s47, v7")
e(f"  s_mov_b32 s46, 0x{NLOG2E:08x}")
e("  s_waitcnt vmcnt(2)")
e(f"  ds_write_b128 v2, v[24:27] offset:{LW0}")
e(f"  ds_write_b128 v2, v[28:31] offset:{LW1}")
e("  s_waitcnt lgkmcnt(0)")
e("  s_barrier")
for j in range(2):
    for mi, base in ((LW0, 24), (LW1, 32)):
        for sidx in range(2):
            for hh in range(2):
                e(f"  ds_read_b64_tr_b16 v[{base+16*j+4*sidx+2*hh}:{base+16*j+4*sidx+2*hh+1}], v6 offset:{mi + j*32 + sidx*4096 + hh*512}")
e("  s_waitcnt vmcnt(0) lgkmcnt(0)")
for j in range(2):
    A0 = 56 + 8*j
    e(f"  v_mfma_f32_16x16x32_bf16 v[{A0}:{A0+3}], v[16:19], v[{24+16*j}:{27+16*j}], 0")
    e(f"  v_mfma_f32_16x16x32_bf16 v[{A0+4}:{A0+7}], v[16:19], v[{32+16*j}:{35+16*j}], 0")
    e(f"  v_mfma_f32_16x16x32_bf16 v[{A0}:{A0+3}], v[20:23], v[{28+16*j}:{31+16*j}], v[{A0}:{A0+3}]")
    e(f"  v_mfma_f32_16x16x32_bf16 v[{A0+4}:{A0+7}], v[20:23], v[{36+16*j}:{39+16*j}], v[{A0+4}:{A0+7}]")
e("  s_barrier")
e("  s_nop 7")
e("  s_nop 3")
for j in range(2):
    A0 = 56 + 8*j
    for i in range(4):
        e(f"  v_mul_f32 v{A0+i}, s46, v{A0+i}")
    for i in range(4):
        e(f"  v_cvt_pk_bf16_f32 v{72+i}, v{A0+i}, v{A0+4+i}")
    if OPT['nomask']:
        for i in range(4):
            e(f"  v_and_b32 v{72+i}, 0xffff, v{72+i}")
            e(f"  v_and_b32 v{A0+i}, 0x7fffffff, v{A0+4+i}")
            e(f"  v_sub_u32 v{A0+i}, v{A0+i}, v{72+i}")
            e(f"  v_add_u32 v{A0+i}, 0x8000, v{A0+i}")
            e(f"  v_max_i32 v{A0+i}, 0, v{A0+i}")
            e(f"  v_and_b32 v{A0+i}, 0xffff0000, v{A0+i}")
            e(f"  v_and_b32 v{A0+4+i}, 0x80000000, v{A0+4+i}")
            e(f"  v_or3_b32 v{72+i}, v{A0+i}, v{A0+4+i}, v{72+i}")
    for i in range(4):
        e(f"  buffer_store_dword v{72+i}, v7, s[32:35], 0 offen offset:{i*256+j*64}")
rt_endA()
e("A_done:")
e("  s_endpgm")

KERN[0] = 'B'
L_CNT = 0
L_MAX = 256
L_P = 1024
L_AGG = 17408
L_LIST = 33792
L_W = L_LIST + 32768 + 1024
LDS_B = L_W + 16384

V_G4, V_START, V_EADDR, V_T16, V_RB, V_REM = 88, 89, 90, 91, 92, 96
EV = [100 + 2*k for k in range(8)]
IDX = [116 + 2*m for m in range(4)]
V_FL, V_ONE, V_ONES = 124, 125, 126
R = [56 + 4*k for k in range(8)]

e(".globl agg_kernel")
e(".p2align 8")
e(".type agg_kernel,@function")
e("agg_kernel:")
if OPT['emptyB']:
    e("  s_endpgm")
e(f"  s_cmp_ge_u32 s2, {NB}")
e("  s_cbranch_scc1 B_done")
if OPT['rt']:
    e("  s_memrealtime s[100:101]")
    e("  s_mov_b32 s99, s2")
stamp(0)
e("  s_load_dwordx4 s[4:7], s[0:1], 48")
e("  s_load_dwordx2 s[8:9], s[0:1], 72")
e("  s_load_dwordx2 s[10:11], s[0:1], 0")
e("  s_load_dwordx2 s[46:47], s[0:1], 32")
e("  s_and_b32 s3, s2, 7")
e("  s_lshr_b32 s2, s2, 3")
e("  s_mov_b32 s96, s2")
e("  s_mul_i32 s44, s3, 31")
e("  s_min_u32 s3, s3, 2")
e("  s_add_u32 s2, s2, s44")
e("  s_add_u32 s2, s2, s3")
e("  v_lshrrev_b32 v3, 6, v0")
e("  v_and_b32 v1, 15, v0")
e("  v_readfirstlane_b32 s40, v3")
e("  v_lshlrev_b32 v1, 4, v1")
e("  v_and_b32 v2, 63, v0")
e("  s_waitcnt lgkmcnt(0)")
srd(20, 8, 9, 256*1024, OFFS_OFF)
e("  v_lshrrev_b32 v3, 4, v0")
e(f"  v_lshlrev_b32 v{V_FL}, 4, v3")
e("  s_lshl_b32 s50, s2, 10")
e(f"  buffer_load_dwordx4 v[4:7], v{V_FL}, s[20:23], s50 offen")
e(f"  s_add_u32 s12, s8, {QH_OFF}")
e("  s_addc_u32 s13, s9, 0")
e("  s_or_b32 s13, s13, 0x01000000")
e(f"  s_mov_b32 s14, {N}")
e("  s_mov_b32 s15, 0x20000")
srd(16, 8, 9, NW*CH*8, REC_OFF)
srd(24, 10, 11, N*128)
e("  s_cmp_lt_u32 s40, 8")
e("  s_cselect_b32 s28, s4, s46")
e("  s_cselect_b32 s29, s5, s47")
e("  s_mov_b32 s30, 8192")
e("  s_mov_b32 s31, 0x20000")
srd(32, 6, 7, N*128)
srd(36, 4, 5, 129*128)
e("  s_and_b32 s55, s40, 7")
e("  s_mov_b32 s48, 0x3f80")
e("  s_mov_b32 s49, 0xffff0000")
e(f"  s_mov_b32 s51, 0x{NLOG2E:08x}")
e(f"  v_lshlrev_b32 v{V_T16}, 4, v0")
e(f"  v_bfe_u32 v{V_G4}, v0, 4, 2")
e("  v_and_b32 v52, 15, v0")
e("  v_and_b32 v53, 511, v0")
e("  v_lshlrev_b32 v53, 4, v53")
e("  buffer_load_dwordx4 v[8:11], v53, s[28:31], 0 offen")
def lds_init(first):
    e("  v_mov_b32 v48, 0xffff")
    e("  v_mov_b32 v49, 0xffff")
    e("  v_mov_b32 v50, 0xffff")
    e("  v_mov_b32 v51, 0xffff")
    e(f"  ds_write_b128 v{V_T16}, v[48:51] offset:{L_LIST}")
    e(f"  ds_write_b128 v{V_T16}, v[48:51] offset:{L_LIST+16384}")
    e("  v_lshlrev_b32 v53, 4, v2")
    e(f"  v_add_u32 v53, {L_LIST+32768}, v53")
    e("  ds_write_b128 v53, v[48:51]")
    e("  v_lshlrev_b32 v53, 2, v2")
    e("  v_mov_b32 v54, 0")
    e(f"  ds_write_b32 v53, v54 offset:{L_CNT}")
    if first:
        e(f"  v_mov_b32 v53, {L_MAX}")
        e("  s_mov_b64 exec, 1")
        e("  ds_write_b32 v53, v54")
        e("  s_mov_b64 exec, -1")

lds_init(True)
for k in range(8):
    e(f"  v_mov_b32 v{EV[k]}, 0")
for m in range(4):
    e(f"  v_mov_b32 v{IDX[m]+1}, v1")
e(f"  v_mov_b32 v{V_ONES}, 1.0")
e(f"  v_mov_b32 v{V_ONES+1}, 1.0")
e(f"  v_mov_b32 v{V_ONE}, 1")
e(f"  s_mov_b32 s45, {CH*8}")
e("  v_lshlrev_b32 v55, 1, v52")
e("  s_waitcnt lgkmcnt(0)")
stamp(1)
e("  s_barrier")
stamp(2)
e(f"  v_cmp_gt_u32 vcc, {NW-192}, v3")
e("  s_waitcnt vmcnt(1)")
e("  v_cndmask_b32 v7, 0, v7, vcc")
for r in range(4):
    e(f"  v_add_u32 v53, {64*r}, v3")
    e(f"  v_mul_lo_u32 v53, v53, s45")
    e(f"  v_and_b32 v54, 0xffff, v{4+r}")
    e(f"  v_add_u32 v54, v54, v55")
    e(f"  v_lshl_add_u32 v{V_RB+r}, v54, 3, v53")
    e(f"  v_lshrrev_b32 v{4+r}, 16, v{4+r}")
    e(f"  v_sub_u32 v{V_REM+r}, v{4+r}, v55")
e("  s_mov_b32 s41, 0")

def rec_loads():
    e("  s_lshl_b32 s50, s41, 3")
    e("  s_add_u32 s52, s41, 1")
    for r in range(4):
        for sub in range(2):
            k = r*2+sub
            e(f"  v_cmp_lt_i32 s[{56+2*k}:{57+2*k}], s{41 if sub==0 else 52}, v{V_REM+r}")
    e("  s_nop 3")
    for r in range(4):
        e(f"  s_or_b64 exec, s[{56+4*r}:{57+4*r}], 1")
        e(f"  buffer_load_dwordx4 v[{16+4*r}:{19+4*r}], v{V_RB+r}, s[16:19], s50 offen")
    e("  s_mov_b64 exec, -1")

rec_loads()
e("  v_max_u32 v4, v4, v5")
e("  v_max_u32 v6, v6, v7")
e("  v_max_u32 v4, v4, v6")
e("  s_nop 1")
e("  v_max_u32_dpp v4, v4, v4 row_bcast:15 row_mask:0xa bank_mask:0xf")
e("  s_nop 1")
e("  v_max_u32_dpp v4, v4, v4 row_bcast:31 row_mask:0xc bank_mask:0xf")
e("  s_nop 1")
e("  v_readlane_b32 s44, v4, 63")
e("  s_nop 3")
e("  v_mov_b32 v4, s44")
e(f"  v_mov_b32 v53, {L_MAX}")
e("  s_mov_b64 exec, 1")
e("  ds_max_u32 v53, v4")
e("  s_mov_b64 exec, -1")
e("  s_cmp_lt_u32 s55, 4")
e(f"  s_mov_b32 s52, {L_AGG}")
e(f"  s_cselect_b32 s52, {L_P}, s52")
e("  s_cselect_b32 s97, s51, 1.0")
e("  s_lshr_b32 s53, s40, 3")
e("  s_lshl_b32 s53, s53, 13")
e("  s_add_u32 s52, s52, s53")
e("  s_and_b32 s54, s55, 3")
e("  s_lshl_b32 s54, s54, 6")
e("  s_add_u32 s52, s52, s54")
e(f"  v_lshlrev_b32 v5, 10, v{V_G4}")
e("  v_lshl_add_u32 v5, v52, 2, v5")
e("  v_add_u32 v5, s52, v5")
e("  s_waitcnt vmcnt(4)")
e(f"  v_add_u32 v53, {L_W}, v{V_T16}")
e("  ds_write_b128 v53, v[8:11]")
e("  s_waitcnt vmcnt(0)")
e("  s_branch B_count")
e("B_layer:")
lds_init(False)
e("  s_waitcnt lgkmcnt(0)")
e("  s_barrier")
rec_loads()
e("  s_waitcnt vmcnt(0)")
e("B_count:")
for k in range(8):
    e(f"  v_lshlrev_b32 v{17+2*k}, 2, v{17+2*k}")
    e(f"  s_mov_b64 exec, s[{56+2*k}:{57+2*k}]")
    e(f"  ds_add_rtn_u32 v{32+k}, v{17+2*k}, v{V_ONE} offset:{L_CNT}")
    e("  s_mov_b64 exec, -1")
e("  s_cmp_lg_u32 s41, 0")
e("  s_cbranch_scc1 B_noabc")
e(f"  v_lshrrev_b32 v{V_EADDR}, 1, v1")
e(f"  v_add_u32 v{V_EADDR}, {128*128}, v{V_EADDR}")
e(f"  buffer_load_dwordx2 v[44:45], v{V_EADDR}, s[36:39], 0 offen")
e(f"  s_mul_i32 s52, s2, {NPB}")
e("  s_lshr_b32 s53, s40, 3")
e("  s_lshl_b32 s53, s53, 5")
e("  s_add_u32 s52, s52, s53")
e("  v_and_b32 v52, 15, v0")
e("  v_add_u32 v53, s52, v52")
e("  v_lshlrev_b32 v53, 7, v53")
e(f"  v_lshl_add_u32 v53, v{V_G4}, 4, v53")
e("  buffer_load_dwordx4 v[56:59], v53, s[24:27], 0 offen")
e("  buffer_load_dwordx4 v[60:63], v53, s[24:27], 0 offen offset:64")
e("  buffer_load_dwordx4 v[64:67], v53, s[24:27], 0 offen offset:2048")
e("  buffer_load_dwordx4 v[68:71], v53, s[24:27], 0 offen offset:2112")

e(f"  v_lshlrev_b32 v{V_G4}, 2, v{V_G4}")
e("B_noabc:")
e("  s_waitcnt lgkmcnt(0)")
stamp(3)
e("  s_barrier")
stamp(4)
e("  v_lshlrev_b32 v52, 2, v2")
e(f"  ds_read_b32 v53, v52 offset:{L_CNT}")
e(f"  v_mov_b32 v52, {L_MAX}")
e("  ds_read_b32 v54, v52")
e(f"  v_cmp_gt_u32 vcc, {NPB}, v2")
e("  s_waitcnt lgkmcnt(0)")
e("  v_readfirstlane_b32 s42, v54")
e("  v_cndmask_b32 v53, 0, v53, vcc")
e("  v_add_u32 v53, 3, v53")
e("  v_lshrrev_b32 v53, 2, v53")
e("  v_mov_b32 v54, v53")
dpp_scan(54)
e(f"  v_sub_u32 v{V_START}, v54, v53")
e("  v_readlane_b32 s43, v54, 63")
for k in range(8):
    e(f"  ds_bpermute_b32 v{72+k}, v{17+2*k}, v{V_START}")
e("  s_waitcnt lgkmcnt(0)")
for k in range(8):
    e(f"  v_lshl_add_u32 v{72+k}, v{72+k}, 2, v{32+k}")
    e(f"  v_lshlrev_b32 v{72+k}, 2, v{72+k}")
    e(f"  s_mov_b64 exec, s[{56+2*k}:{57+2*k}]")
    e(f"  ds_write_b32 v{72+k}, v{16+2*k} offset:{L_LIST}")
    e("  s_mov_b64 exec, -1")
e("  s_cmp_lg_u32 s41, 0")
e("  s_cbranch_scc1 B_nomfma")
e("  v_bfe_u32 v53, v0, 2, 2")
e("  v_bfe_u32 v54, v0, 4, 2")
e("  v_lshl_add_u32 v53, v54, 3, v53")
e("  v_lshlrev_b32 v53, 7, v53")
e("  v_and_b32 v54, 3, v0")
e("  v_lshl_add_u32 v53, v54, 3, v53")
e("  s_lshr_b32 s52, s55, 2")
e("  s_lshl_b32 s52, s52, 13")
e("  s_and_b32 s54, s55, 3")
e("  s_lshl_b32 s54, s54, 5")
e("  s_add_u32 s52, s52, s54")
e(f"  s_add_u32 s52, s52, {L_W}")
e("  v_add_u32 v53, s52, v53")
for sidx in range(2):
    for hh in range(2):
        e(f"  ds_read_b64_tr_b16 v[{8+4*sidx+2*hh}:{9+4*sidx+2*hh}], v53 offset:{sidx*4096 + hh*512}")
e("  s_waitcnt vmcnt(0) lgkmcnt(0)")
e("  v_mfma_f32_16x16x32_bf16 v[80:83], v[56:59], v[8:11], 0")
e("  v_mfma_f32_16x16x32_bf16 v[84:87], v[64:67], v[8:11], 0")
e("  v_mfma_f32_16x16x32_bf16 v[80:83], v[60:63], v[12:15], v[80:83]")
e("  v_mfma_f32_16x16x32_bf16 v[84:87], v[68:71], v[12:15], v[84:87]")
e("  s_nop 7")
e("  s_nop 1")
for i in range(8):
    e(f"  v_mul_f32 v{80+i}, s97, v{80+i}")
for i in range(4):
    e(f"  ds_write_b32 v5, v{80+i} offset:{i*256}")
    e(f"  ds_write_b32 v5, v{84+i} offset:{4096+i*256}")
e("  v_lshlrev_b32 v12, 16, v44")
e("  v_and_b32 v13, s49, v44")
e("  v_lshlrev_b32 v14, 16, v45")
e("  v_and_b32 v15, s49, v45")
for i in range(4):
    e(f"  v_mul_f32 v{12+i}, s51, v{12+i}")
e("B_nomfma:")
e("  s_waitcnt lgkmcnt(0)")
stamp(5)
e("  s_barrier")
stamp(6)
e("  s_mul_i32 s44, s43, s40")
e("  s_lshr_b32 s44, s44, 4")
e("  s_add_u32 s45, s40, 1")
e("  s_mul_i32 s45, s43, s45")
e("  s_lshr_b32 s45, s45, 4")
e("  s_cmp_eq_u32 s44, s45")
e("  s_cbranch_scc1 B_loop_end")
e("  s_lshl_b32 s50, s44, 4")
e(f"  v_add_u32 v{V_EADDR}, s50, v{V_G4}")
if OPT['prio']:
    e("  s_sub_u32 s50, s45, s44")
    e("  s_lshr_b32 s50, s50, 2")
    e("  s_add_u32 s52, s44, s50")
    e("  s_add_u32 s53, s52, s50")
    e("  s_add_u32 s54, s53, s50")
    e("  s_setprio 3")

def node_setup():
    e(f"  v_cmp_ge_u32 vcc, s44, v{V_START}")
    e("  s_nop 3")
    e("  s_bcnt1_i32_b64 s47, vcc")
    e(f"  v_readlane_b32 s46, v{V_START}, s47")
    e("  s_sub_u32 s47, s47, 1")
    e("  s_lshl_b32 s50, s47, 8")
    e(f"  v_add_u32 v{V_FL}, s50, v1")
    e(f"  ds_read_b128 v[40:43], v{V_FL} offset:{L_P}")
    e("  s_min_u32 s46, s46, s45")
    e("  v_mov_b32 v44, 0")
    e("  v_mov_b32 v45, 0")
    e("  v_mov_b32 v46, 0")
    e("  v_mov_b32 v47, 0")
    e("  s_waitcnt lgkmcnt(0)")

def flush():
    e("  s_nop 1")
    e("  v_permlane32_swap_b32 v44, v46")
    e("  v_permlane32_swap_b32 v45, v47")
    e("  s_nop 1")
    e("  v_add_f32 v44, v44, v46")
    e("  v_add_f32 v45, v45, v47")
    e("  s_nop 1")
    e("  v_permlane16_swap_b32 v44, v45")
    e("  s_nop 1")
    e("  v_add_f32 v44, v44, v45")
    e(f"  v_add_u32 v{V_FL}, v{V_FL}, v{V_G4}")
    e(f"  ds_add_f32 v{V_FL}, v44 offset:{L_AGG}")

def row_load(k, m):
    if not OPT['noload']:
        e(f"  buffer_load_dwordx4 v[{R[k]}:{R[k]+3}], v[{IDX[m]}:{IDX[m]+1}], s[12:15], 0 idxen offen")

for half in range(2):
    for m in range(4):
        e(f"  ds_read_u16 v{IDX[m]}, v{V_EADDR} offset:{L_LIST + 16*(4*half+m)}")
    e("  s_waitcnt lgkmcnt(0)")
    for m in range(4):
        row_load(4*half+m, m)
for m in range(4):
    e(f"  ds_read_u16 v{IDX[m]}, v{V_EADDR} offset:{L_LIST + 16*(8+m)}")
    e(f"  ds_read_u16_d16_hi v{EV[m]}, v{V_EADDR} offset:{L_LIST + 16*m + 2}")
node_setup()

def compute(k):
    r = R[k]; ev = EV[k]
    e(f"  v_pk_fma_f32 v[48:49], v[{ev}:{ev+1}], v[12:13], v[40:41] op_sel_hi:[0,1,1]")
    e(f"  v_pk_fma_f32 v[50:51], v[{ev}:{ev+1}], v[14:15], v[42:43] op_sel_hi:[0,1,1]")
    if OPT['dot2']:
        for i in range(4):
            e(f"  v_dot2_f32_bf16 v{48+i}, v{r+i}, s48, v{48+i}")
    else:
        for i in range(4):
            e(f"  v_lshlrev_b32 v{52+i}, 16, v{r+i}")
        e("  v_pk_add_f32 v[48:49], v[48:49], v[52:53]")
        e("  v_pk_add_f32 v[50:51], v[50:51], v[54:55]")
    for i in range(4):
        e(f"  v_exp_f32 v{48+i}, v{48+i}")
    e(f"  v_pk_add_f32 v[48:49], v[48:49], v[{V_ONES}:{V_ONES+1}]")
    e(f"  v_pk_add_f32 v[50:51], v[50:51], v[{V_ONES}:{V_ONES+1}]")
    for i in range(4):
        e(f"  v_rcp_f32 v{48+i}, v{48+i}")
    if OPT['nomask']:
        e("  s_nop 0")
        e(f"  v_pk_fma_f32 v[44:45], v[{r}:{r+1}], v[48:49], v[44:45]")
        e(f"  v_pk_fma_f32 v[46:47], v[{r+2}:{r+3}], v[50:51], v[46:47]")
    else:
        for i in range(4):
            e(f"  v_and_b32 v{52+i}, s49, v{r+i}")
        e("  v_pk_fma_f32 v[44:45], v[52:53], v[48:49], v[44:45]")
        e("  v_pk_fma_f32 v[46:47], v[54:55], v[50:51], v[46:47]")

e("B_loop:")
if OPT['prio']:
    e("  s_cmp_ge_u32 s44, s52")
    e("  s_cbranch_scc0 B_prio_done")
    e("  s_setprio 2")
    e("  s_cmp_ge_u32 s44, s53")
    e("  s_cbranch_scc0 B_prio_done")
    e("  s_setprio 1")
    e("  s_cmp_ge_u32 s44, s54")
    e("  s_cbranch_scc0 B_prio_done")
    e("  s_setprio 0")
    e("B_prio_done:")
for k in range(8):
    e("  s_cmp_eq_u32 s44, s46")
    e(f"  s_cbranch_scc1 B_switch{k}")
    e(f"B_cont{k}:")
    e("  s_waitcnt vmcnt(7) lgkmcnt(6)")
    if not OPT['nocomp']:
        compute(k)
    else:
        e(f"  v_add_f32 v44, v44, v{R[k]}")
    row_load(k, k % 4)
    e(f"  ds_read_u16 v{IDX[k%4]}, v{V_EADDR} offset:{L_LIST + 16*(k+12)}")
    e(f"  ds_read_u16_d16_hi v{EV[(k+4)%8]}, v{V_EADDR} offset:{L_LIST + 16*(k+4) + 2}")
    e("  s_add_u32 s44, s44, 1")
e(f"  v_add_u32 v{V_EADDR}, 128, v{V_EADDR}")
e("  s_branch B_loop")
for k in range(8):
    e(f"B_switch{k}:")
    flush()
    e("  s_cmp_eq_u32 s44, s45")
    e("  s_cbranch_scc1 B_loop_end")
    node_setup()
    e(f"  s_branch B_cont{k}")
e("B_loop_end:")
e("  s_setprio 0")
e("  s_waitcnt vmcnt(0) lgkmcnt(0)")
stamp(7) if OPT['stamp']!=2 else None
e("  s_barrier")
stamp(8) if OPT['stamp']!=2 else None
e("  s_add_u32 s41, s41, 32")
e("  s_cmp_lt_u32 s41, s42")
e("  s_cbranch_scc1 B_layer")
e(f"  v_cmp_gt_u32 vcc, {NPB*16}, v0")
e("  s_and_saveexec_b64 s[54:55], vcc")
e("  s_cbranch_execz B_epi_end")
e(f"  ds_read_b128 v[40:43], v{V_T16} offset:{L_AGG}")
e("  s_waitcnt lgkmcnt(0)")
for i in range(4):
    e(f"  v_mul_f32 v{44+i}, s51, v{40+i}")
for i in range(4):
    e(f"  v_exp_f32 v{44+i}, v{44+i}")
e("  s_nop 0")
for i in range(4):
    e(f"  v_add_f32 v{44+i}, 1.0, v{44+i}")
for i in range(4):
    e(f"  v_rcp_f32 v{44+i}, v{44+i}")
e("  s_nop 0")
for i in range(4):
    e(f"  v_mul_f32 v{40+i}, v{40+i}, v{44+i}")
e("  v_cvt_pk_bf16_f32 v48, v40, v41")
e("  v_cvt_pk_bf16_f32 v49, v42, v43")
e("  v_lshlrev_b32 v50, 3, v0")
e(f"  s_mul_i32 s52, s2, {NPB*128}")
e("  buffer_store_dwordx2 v[48:49], v50, s[32:35], s52 offen")
e("B_epi_end:")
if OPT['stamp'] in (1, 2):
    e("  s_waitcnt vmcnt(0)")
    stamp(9) if OPT['stamp']!=2 else None
    stamp_dump(10, 100)
    e("  s_mov_b64 exec, -1")
    e("  s_cmp_eq_u32 s2, 100")
    e("  s_cbranch_scc0 B_done")
    e("  s_load_dwordx2 s[92:93], s[0:1], 64")
    e("  s_waitcnt lgkmcnt(0)")
    e("  s_mov_b32 s94, 4096")
    e("  s_mov_b32 s95, 0x20000")
    e("  s_lshl_b32 s98, s40, 4")
    e("  s_add_u32 s98, s98, 64")
    e("  v_mov_b32 v1, s98")
    for i, st in enumerate((0, 1, 3, 7) if OPT['stamp']!=2 else (8, 9, 7, 1)):
        e(f"  s_sub_u32 s99, s{72+2*st}, s72")
        e(f"  v_mov_b32 v{4+i}, s99")
    e("  buffer_store_dwordx4 v[4:7], v1, s[92:95], 0 offen")
if OPT['rt']:
    e("  s_waitcnt vmcnt(0)")
    e("  s_mov_b64 exec, -1")
    e("  s_memrealtime s[92:93]")
    e("  s_load_dwordx2 s[94:95], s[0:1], 72")
    e("  s_waitcnt lgkmcnt(0)")
    e("  s_add_u32 s88, s94, 33619968")
    e("  s_addc_u32 s89, s95, 0")
    e("  s_mov_b32 s90, 0x10000")
    e("  s_mov_b32 s91, 0x20000")
    e("  v_lshrrev_b32 v1, 6, v0")
    e("  v_lshlrev_b32 v1, 3, v1")
    e("  s_lshl_b32 s98, s99, 7")
    e("  v_add_u32 v1, s98, v1")
    e("  v_mov_b32 v2, s100")
    e("  v_mov_b32 v3, s92")
    e("  s_mov_b64 exec, 1")
    e("  buffer_store_dwordx2 v[2:3], v1, s[88:91], 0 offen")
e("B_done:")
e("  s_endpgm")

e('.section .rodata,"a"')
for name, vg, sg in (("prep_kernel", 88, 72 if OPT['rt'] else 56), ("agg_kernel", 128, 98)):
    if OPT['stamp'] or (OPT['rt'] and name == 'agg_kernel'):
        sg = 102
    e(".p2align 6")
    e(f".amdhsa_kernel {name}")
    e(f"  .amdhsa_next_free_vgpr {vg}")
    e(f"  .amdhsa_next_free_sgpr {sg}")
    e(f"  .amdhsa_accum_offset {vg}")
    e("  .amdhsa_group_segment_fixed_size 0")
    e("  .amdhsa_kernarg_size 80")
    e("  .amdhsa_user_sgpr_count 2")
    e("  .amdhsa_user_sgpr_kernarg_segment_ptr 1")
    e("  .amdhsa_system_sgpr_workgroup_id_x 1")
    e(".end_amdhsa_kernel")

path = OPT.get('out', None)
open(OUTPATH, 'w').write('\n'.join(x for x in out if x is not None) + '\n')
```

```python
import sys

N = 12500
NB = 250
NPB = 50
CH = 3200
NW = 250
NG = 49
QH_OFF = 0
P_OFF = 0x400000
U_OFF = 0x800000
REC_OFF = 0xC00000
OFFS_OFF = 0x1400000
FR_OFF = 0x1500000
NLOG2E = 0xBFB8AA3B

OPT = dict(dot2=False, nomask=False, stamp=0, noload=0, nocomp=0, noflush=0, nodsr=0, stflag=1, outflag=1, pq=0, rt=0, prio=1, warm=0, emptyA=0, emptyB=0, w0=0, bslot=0)
OUTPATH = 'standalone__edge_featured_mpnn_egc__graph.s'
for a in sys.argv[1:]:
    if '=' in a:
        k, v = a.split('=')
        if k == 'out':
            OUTPATH = v
        else:
            OPT[k] = int(v)

out = []
STF = ['', ' sc1', ' nt', ' sc0 sc1'][OPT['stflag']]
import re
def e(s=''):
    if s.lstrip().startswith('buffer_'):
        m = re.search(r'offset:(\d+)', s)
        assert not m or int(m.group(1)) < 4096, s
    if s.lstrip().startswith('ds_'):
        m = re.search(r'offset:(\d+)', s)
        assert not m or int(m.group(1)) < 65536, s
    out.append(s)

HEADER = """; Kernarg layout for this problem (80 bytes, ptrs only, base s[0:1]):
;   offset   0: d_in[0] x  shape=(12500, 64) dtype=bfloat16
;   offset   8: d_in[1] e_attr  shape=(800000, 1) dtype=bfloat16
;   offset  16: d_in[2] src  shape=(800000,) dtype=int32
;   offset  24: d_in[3] dst  shape=(800000,) dtype=int32
;   offset  32: d_in[4] u_w  shape=(64, 64) dtype=bfloat16
;   offset  40: d_in[5] v_w  shape=(64, 64) dtype=bfloat16
;   offset  48: d_in[6] g_w  shape=(129, 64) dtype=bfloat16
;   offset  56: d_out     shape=(12500, 64) dtype=bfloat16
;   offset  64: d_debug   256 bytes
;   offset  72: d_ws      268435456 bytes workspace
; @launch kernel=prep_kernel grid=(%d,1,1) block=(1024,1,1) lds=55296
; @launch kernel=agg_kernel grid=(%d,1,1) block=(1024,1,1) lds=93184
.amdgcn_target "amdgcn-amd-amdhsa--gfx950"
.text""" % (NW, NB)
e(HEADER)

def srd(d, lo, hi, size, add=None):
    if add is None:
        e(f"  s_mov_b32 s{d}, s{lo}")
        e(f"  s_mov_b32 s{d+1}, s{hi}")
    else:
        e(f"  s_add_u32 s{d}, s{lo}, {add}")
        e(f"  s_addc_u32 s{d+1}, s{hi}, 0")
    e(f"  s_mov_b32 s{d+2}, {size}")
    e(f"  s_mov_b32 s{d+3}, 0x20000")

KERN = ['A']
def stamp(idx):
    if not OPT['stamp']:
        return
    if (KERN[0] == 'A') != (OPT['stamp'] >= 3):
        return
    e(f"  s_memtime s[{72+2*idx}:{73+2*idx}]")
    e("  s_waitcnt lgkmcnt(0)")

def stamp_dump(nst, wg):
    if not OPT['stamp']:
        return
    if (KERN[0] == 'A') != (OPT['stamp'] >= 3):
        return
    lab = f"stamp_skip_{len(out)}"
    e("  s_mov_b64 exec, -1")
    e("  v_readfirstlane_b32 s98, v0")
    e("  s_nop 3")
    e(f"  s_cmp_eq_u32 s2, {wg}")
    e(f"  s_cbranch_scc0 {lab}")
    e("  s_cmp_eq_u32 s98, 0")
    e(f"  s_cbranch_scc0 {lab}")
    e("  s_load_dwordx2 s[92:93], s[0:1], 64")
    e("  s_waitcnt lgkmcnt(0)")
    e("  s_mov_b32 s94, 256")
    e("  s_mov_b32 s95, 0x20000")
    e("  v_mov_b32 v1, 0")
    for i in range(1, nst):
        e(f"  s_sub_u32 s98, s{72+2*i}, s72")
        e("  v_mov_b32 v2, s98")
        e(f"  buffer_store_dword v2, v1, s[92:95], 0 offen offset:{4*i}")
    e(f"{lab}:")

def dpp_scan(v):
    for sh in (1, 2, 4, 8):
        e("  s_nop 1")
        e(f"  v_add_u32_dpp v{v}, v{v}, v{v} row_shr:{sh} row_mask:0xf bank_mask:0xf bound_ctrl:0")
    e("  s_nop 1")
    e(f"  v_add_u32_dpp v{v}, v{v}, v{v} row_bcast:15 row_mask:0xa bank_mask:0xf")
    e("  s_nop 1")
    e(f"  v_add_u32_dpp v{v}, v{v}, v{v} row_bcast:31 row_mask:0xc bank_mask:0xf")
    e("  s_nop 1")

LW0 = 36864
LW1 = LW0 + 9216
LDS_A = LW1 + 9216

def rt_endA():
    if OPT['rt']:
        e("  s_waitcnt vmcnt(0)")
        e("  s_mov_b64 exec, -1")
        e("  s_memrealtime s[56:57]")
        e("  s_load_dwordx2 s[58:59], s[0:1], 72")
        e("  s_waitcnt lgkmcnt(0)")
        e("  s_add_u32 s52, s58, 0x2000000")
        e("  s_addc_u32 s53, s59, 0")
        e("  s_mov_b32 s54, 0x10000")
        e("  s_mov_b32 s55, 0x20000")
        e("  v_lshrrev_b32 v1, 6, v0")
        e("  v_lshlrev_b32 v1, 3, v1")
        e("  s_lshl_b32 s62, s2, 7")
        e("  v_add_u32 v1, s62, v1")
        e("  v_mov_b32 v2, s64")
        e("  v_mov_b32 v3, s56")
        e("  s_mov_b64 exec, 1")
        e("  buffer_store_dwordx2 v[2:3], v1, s[52:55], 0 offen")

e(".globl prep_kernel")
e(".p2align 8")
e(".type prep_kernel,@function")
e("prep_kernel:")
if OPT['emptyA']:
    e("  s_endpgm")
e(f"  s_cmp_ge_u32 s2, {NW}")
e("  s_cbranch_scc1 A_done")
if OPT['rt']:
    e("  s_memrealtime s[64:65]")
stamp(0)
e("  s_load_dwordx16 s[4:19], s[0:1], 0")
e("  s_load_dwordx2 s[20:21], s[0:1], 72")
e("  v_lshrrev_b32 v1, 6, v0")
e("  s_nop 0")
e("  v_readfirstlane_b32 s23, v1")
e("  s_nop 3")
e("  s_cmp_ge_u32 s23, 8")
e("  s_cbranch_scc1 A_gemm")
e("  s_cmp_eq_u32 s23, 7")
e("  s_cbranch_scc1 A_done")
D0, S0, E0, PR, AD, RK, BS = 8, 16, 24, 28, 44, 52, 60
e("  s_waitcnt lgkmcnt(0)")
e(f"  s_mul_i32 s22, s2, {CH*4}")
srd(24, 10, 11, CH*4, "s22")
srd(28, 8, 9, CH*4, "s22")
e(f"  s_mul_i32 s22, s2, {CH*2}")
srd(32, 6, 7, CH*2, "s22")
e("  v_lshlrev_b32 v1, 4, v0")
e("  v_lshlrev_b32 v2, 5, v0")
e(f"  v_cmp_gt_u32 vcc, {CH//8}, v0")
e("  s_mov_b64 s[44:45], vcc")
e("  s_mov_b64 exec, s[44:45]")
e(f"  buffer_load_dwordx4 v[{D0}:{D0+3}], v2, s[24:27], 0 offen")
e(f"  buffer_load_dwordx4 v[{D0+4}:{D0+7}], v2, s[24:27], 0 offen offset:16")
e(f"  buffer_load_dwordx4 v[{S0}:{S0+3}], v2, s[28:31], 0 offen")
e(f"  buffer_load_dwordx4 v[{S0+4}:{S0+7}], v2, s[28:31], 0 offen offset:16")
e(f"  buffer_load_dwordx4 v[{E0}:{E0+3}], v1, s[32:35], 0 offen")
e("  s_mov_b64 exec, -1")
e(f"  s_mul_i32 s22, s2, {CH*8}")
e(f"  s_add_u32 s22, s22, {REC_OFF}")
srd(36, 20, 21, CH*8, "s22")
srd(40, 20, 21, 256*1024, OFFS_OFF)
e("  s_mov_b32 s48, 0xffff0000")
e("  s_and_b32 s49, s2, 63")
e("  s_lshl_b32 s49, s49, 4")
e("  s_lshr_b32 s50, s2, 6")
e("  s_lshl_b32 s50, s50, 2")
e("  s_add_u32 s49, s49, s50")
e("  v_lshlrev_b32 v3, 2, v0")
e("  v_mov_b32 v4, 0")
e("  v_mov_b32 v5, 1")
e("  ds_write_b32 v3, v4")
e("  s_waitcnt lgkmcnt(0)")
stamp(1)
e("  s_barrier")
stamp(2)
e("  s_mov_b64 exec, s[44:45]")
e("  s_waitcnt vmcnt(3)")
for i in range(8):
    e(f"  v_mul_u32_u24 v{AD+i}, 5243, v{D0+i}")
    e(f"  v_lshrrev_b32 v{AD+i}, 18, v{AD+i}")
    e(f"  v_mul_u32_u24 v{BS+i}, {NPB}, v{AD+i}")
    e(f"  v_sub_u32 v{PR+1+2*i}, v{D0+i}, v{BS+i}")
    e(f"  v_lshlrev_b32 v{AD+i}, 2, v{AD+i}")
    e(f"  ds_add_rtn_u32 v{RK+i}, v{AD+i}, v5")
e("  s_mov_b64 exec, -1")
e("  s_waitcnt lgkmcnt(0)")
stamp(3)
e("  s_barrier")
stamp(4)
e("  s_cmp_lg_u32 s23, 0")
e("  s_cbranch_scc1 A_skip3")
e("  ds_read_b128 v[72:75], v1")
e("  s_waitcnt lgkmcnt(0)")
e("  v_add_u32 v77, v72, v73")
e("  v_add_u32 v78, v77, v74")
e("  v_add_u32 v79, v78, v75")
e("  v_mov_b32 v80, v79")
dpp_scan(80)
e("  v_sub_u32 v68, v80, v79")
e("  v_add_u32 v69, v68, v72")
e("  v_add_u32 v70, v68, v77")
e("  v_add_u32 v71, v68, v78")
e("  ds_write_b128 v1, v[68:71] offset:1024")
e("  v_lshlrev_b32 v81, 12, v0")
for i in range(4):
    e(f"  v_lshl_or_b32 v{72+i}, v{72+i}, 16, v{68+i}")
    e(f"  buffer_store_dword v{72+i}, v81, s[40:43], s49 offen offset:{i*1024}")
e("A_skip3:")
e("  s_waitcnt lgkmcnt(0)")
stamp(5)
e("  s_barrier")
stamp(6)
e("  s_mov_b64 exec, s[44:45]")
for i in range(8):
    e(f"  ds_read_b32 v{BS+i}, v{AD+i} offset:1024")
e("  s_waitcnt vmcnt(0)")
for i in range(4):
    e(f"  v_lshl_or_b32 v{PR+4*i}, v{E0+i}, 16, v{S0+2*i}")
    e(f"  v_and_or_b32 v{PR+4*i+2}, v{E0+i}, s48, v{S0+2*i+1}")
e("  s_waitcnt lgkmcnt(0)")
for i in range(8):
    e(f"  v_add_lshl_u32 v{BS+i}, v{BS+i}, v{RK+i}, 3")
    e(f"  ds_write_b64 v{BS+i}, v[{PR+2*i}:{PR+1+2*i}] offset:2048")
e("  s_mov_b64 exec, -1")
e("  s_waitcnt lgkmcnt(0)")
stamp(7)
e("  s_barrier")
stamp(8)
for i in range(4):
    e(f"  ds_read_b128 v[{8+4*i}:{11+4*i}], v1 offset:{2048+448*16*i}")
for i in range(4):
    e(f"  s_movk_i32 s50, {448*16*i}")
    e(f"  s_waitcnt lgkmcnt({3-i})")
    e(f"  buffer_store_dwordx4 v[{8+4*i}:{11+4*i}], v1, s[36:39], s50 offen" + STF)
if OPT['stamp'] == 3:
    e("  s_waitcnt vmcnt(0)")
    stamp(9)
    stamp_dump(10, 100)
rt_endA()
e("  s_endpgm")

e("A_gemm:")
e("  s_waitcnt lgkmcnt(0)")
e("  s_sub_u32 s23, s23, 8")
e("  s_add_u32 s24, s16, 8192")
e("  s_addc_u32 s25, s17, 0")
e("  s_mov_b32 s26, 8192")
e("  s_mov_b32 s27, 0x20000")
srd(36, 14, 15, 8192)
srd(28, 4, 5, N*128)
srd(32, 20, 21, N*256, QH_OFF)
e("  v_subrev_u32 v1, 512, v0")
e("  v_lshlrev_b32 v2, 4, v1")
e("  buffer_load_dwordx4 v[24:27], v2, s[24:27], 0 offen")
e("  buffer_load_dwordx4 v[28:31], v2, s[36:39], 0 offen")
e(f"  s_mul_i32 s44, s2, {NPB}")
e("  s_lshr_b32 s45, s23, 1")
e("  s_lshl_b32 s45, s45, 4")
e("  s_add_u32 s44, s44, s45")
e("  v_and_b32 v3, 15, v0")
e("  v_bfe_u32 v4, v0, 4, 2")
e("  v_add_u32 v5, s44, v3")
e("  v_lshlrev_b32 v5, 7, v5")
e("  v_lshl_add_u32 v5, v4, 4, v5")
e("  buffer_load_dwordx4 v[16:19], v5, s[28:31], 0 offen")
e("  buffer_load_dwordx4 v[20:23], v5, s[28:31], 0 offen offset:64")
e("  s_barrier")
e("  v_bfe_u32 v6, v0, 2, 2")
e("  v_lshl_add_u32 v6, v4, 3, v6")
e("  v_lshlrev_b32 v6, 7, v6")
e("  v_and_b32 v7, 3, v0")
e("  v_lshl_add_u32 v6, v7, 3, v6")
e("  s_and_b32 s45, s23, 1")
e("  s_lshl_b32 s47, s45, 6")
e("  v_add_u32 v6, s47, v6")
e("  v_lshl_add_u32 v7, v4, 2, s44")
e("  v_lshlrev_b32 v7, 8, v7")
e("  v_lshl_add_u32 v7, v3, 2, v7")
e("  s_lshl_b32 s47, s45, 7")
e("  v_add_u32 v7, s47, v7")
e(f"  s_mov_b32 s46, 0x{NLOG2E:08x}")
e("  s_waitcnt vmcnt(2)")
e(f"  ds_write_b128 v2, v[24:27] offset:{LW0}")
e(f"  ds_write_b128 v2, v[28:31] offset:{LW1}")
e("  s_waitcnt lgkmcnt(0)")
e("  s_barrier")
for j in range(2):
    for mi, base in ((LW0, 24), (LW1, 32)):
        for sidx in range(2):
            for hh in range(2):
                e(f"  ds_read_b64_tr_b16 v[{base+16*j+4*sidx+2*hh}:{base+16*j+4*sidx+2*hh+1}], v6 offset:{mi + j*32 + sidx*4096 + hh*512}")
e("  s_waitcnt vmcnt(0) lgkmcnt(0)")
for j in range(2):
    A0 = 56 + 8*j
    e(f"  v_mfma_f32_16x16x32_bf16 v[{A0}:{A0+3}], v[16:19], v[{24+16*j}:{27+16*j}], 0")
    e(f"  v_mfma_f32_16x16x32_bf16 v[{A0+4}:{A0+7}], v[16:19], v[{32+16*j}:{35+16*j}], 0")
    e(f"  v_mfma_f32_16x16x32_bf16 v[{A0}:{A0+3}], v[20:23], v[{28+16*j}:{31+16*j}], v[{A0}:{A0+3}]")
    e(f"  v_mfma_f32_16x16x32_bf16 v[{A0+4}:{A0+7}], v[20:23], v[{36+16*j}:{39+16*j}], v[{A0+4}:{A0+7}]")
e("  s_barrier")
e("  s_nop 7")
e("  s_nop 3")
for j in range(2):
    A0 = 56 + 8*j
    for i in range(4):
        e(f"  v_mul_f32 v{A0+i}, s46, v{A0+i}")
    for i in range(4):
        e(f"  v_cvt_pk_bf16_f32 v{72+i}, v{A0+i}, v{A0+4+i}")
    if OPT['nomask']:
        for i in range(4):
            e(f"  v_and_b32 v{72+i}, 0xffff, v{72+i}")
            e(f"  v_and_b32 v{A0+i}, 0x7fffffff, v{A0+4+i}")
            e(f"  v_sub_u32 v{A0+i}, v{A0+i}, v{72+i}")
            e(f"  v_add_u32 v{A0+i}, 0x8000, v{A0+i}")
            e(f"  v_max_i32 v{A0+i}, 0, v{A0+i}")
            e(f"  v_and_b32 v{A0+i}, 0xffff0000, v{A0+i}")
            e(f"  v_and_b32 v{A0+4+i}, 0x80000000, v{A0+4+i}")
            e(f"  v_or3_b32 v{72+i}, v{A0+i}, v{A0+4+i}, v{72+i}")
    for i in range(4):
        e(f"  buffer_store_dword v{72+i}, v7, s[32:35], 0 offen offset:{i*256+j*64}" + STF)
rt_endA()
e("A_done:")
e("  s_endpgm")

KERN[0] = 'B'
L_CNT = 0
L_MAX = 256
L_P = 1024
L_AGG = 17408
L_LIST = 33792
L_W = L_LIST + 32768 + 1024
L_X = L_W + 16384
LDS_B = L_X + 9216

V_G4, V_START, V_EADDR, V_T16, V_RB, V_REM = 88, 89, 90, 91, 92, 96
EV = [100 + 2*k for k in range(8)]
IDX = [116 + 2*m for m in range(4)]
V_FL, V_ONE, V_ONES = 124, 125, 126
R = [56 + 4*k for k in range(8)]

e(".globl agg_kernel")
e(".p2align 8")
e(".type agg_kernel,@function")
e("agg_kernel:")
if OPT['emptyB']:
    e("  s_endpgm")
e(f"  s_cmp_ge_u32 s2, {NB}")
e("  s_cbranch_scc1 B_done")
if OPT['rt']:
    e("  s_memrealtime s[100:101]")
    e("  s_mov_b32 s99, s2")
stamp(0)
e("  s_load_dwordx4 s[4:7], s[0:1], 48")
e("  s_load_dwordx2 s[8:9], s[0:1], 72")
e("  s_load_dwordx2 s[10:11], s[0:1], 0")
e("  s_load_dwordx2 s[46:47], s[0:1], 32")
e("  s_and_b32 s3, s2, 7")
e("  s_lshr_b32 s2, s2, 3")
e("  s_mov_b32 s96, s2")
e("  s_mul_i32 s44, s3, 31")
e("  s_min_u32 s3, s3, 2")
e("  s_add_u32 s2, s2, s44")
e("  s_add_u32 s2, s2, s3")
e("  v_lshrrev_b32 v3, 6, v0")
e("  v_and_b32 v1, 15, v0")
e("  v_readfirstlane_b32 s40, v3")
e("  v_lshlrev_b32 v1, 4, v1")
e("  v_and_b32 v2, 63, v0")
e("  s_waitcnt lgkmcnt(0)")
srd(20, 8, 9, 256*1024, OFFS_OFF)
e("  v_lshrrev_b32 v3, 4, v0")
e(f"  v_lshlrev_b32 v{V_FL}, 4, v3")
e("  s_lshl_b32 s50, s2, 10")
e(f"  buffer_load_dwordx4 v[4:7], v{V_FL}, s[20:23], s50 offen")
e(f"  s_add_u32 s12, s8, {QH_OFF}")
e("  s_addc_u32 s13, s9, 0")
e("  s_or_b32 s13, s13, 0x01000000")
e(f"  s_mov_b32 s14, {N}")
e("  s_mov_b32 s15, 0x20000")
srd(16, 8, 9, NW*CH*8, REC_OFF)
srd(24, 10, 11, N*128)
e("  s_cmp_lt_u32 s40, 8")
e("  s_cselect_b32 s28, s4, s46")
e("  s_cselect_b32 s29, s5, s47")
e("  s_mov_b32 s30, 8192")
e("  s_mov_b32 s31, 0x20000")
srd(32, 6, 7, N*128)
srd(36, 4, 5, 129*128)
e("  s_and_b32 s55, s40, 7")
e(f"  s_mov_b32 s98, {L_X}")
e("  s_mov_b32 s48, 0x3f80")
e("  s_mov_b32 s49, 0xffff0000")
e(f"  s_mov_b32 s51, 0x{NLOG2E:08x}")
e(f"  v_lshlrev_b32 v{V_T16}, 4, v0")
e(f"  v_bfe_u32 v{V_G4}, v0, 4, 2")
e("  v_and_b32 v52, 15, v0")
e("  v_and_b32 v53, 511, v0")
e("  v_lshlrev_b32 v53, 4, v53")
e("  buffer_load_dwordx4 v[8:11], v53, s[28:31], 0 offen")
e(f"  s_mul_i32 s52, s2, {NPB*128}")
e("  v_lshlrev_b32 v53, 3, v0")
e("  buffer_load_dwordx2 v[12:13], v53, s[24:27], s52 offen")
e(f"  v_lshrrev_b32 v{V_EADDR}, 1, v1")
e(f"  v_add_u32 v{V_EADDR}, {128*128}, v{V_EADDR}")
e(f"  buffer_load_dwordx2 v[44:45], v{V_EADDR}, s[36:39], 0 offen")
def lds_init(first):
    e("  v_mov_b32 v48, 0xffff")
    e("  v_mov_b32 v49, 0xffff")
    e("  v_mov_b32 v50, 0xffff")
    e("  v_mov_b32 v51, 0xffff")
    e(f"  ds_write_b128 v{V_T16}, v[48:51] offset:{L_LIST}")
    e(f"  ds_write_b128 v{V_T16}, v[48:51] offset:{L_LIST+16384}")
    e("  v_lshlrev_b32 v53, 4, v2")
    e(f"  v_add_u32 v53, {L_LIST+32768}, v53")
    e("  ds_write_b128 v53, v[48:51]")
    e("  v_lshlrev_b32 v53, 2, v2")
    e("  v_mov_b32 v54, 0")
    e(f"  ds_write_b32 v53, v54 offset:{L_CNT}")
    if first:
        e(f"  v_mov_b32 v53, {L_MAX}")
        e("  s_mov_b64 exec, 1")
        e("  ds_write_b32 v53, v54")
        e("  s_mov_b64 exec, -1")

lds_init(True)
for k in range(8):
    e(f"  v_mov_b32 v{EV[k]}, 0")
for m in range(4):
    e(f"  v_mov_b32 v{IDX[m]+1}, v1")
e(f"  v_mov_b32 v{V_ONES}, 1.0")
e(f"  v_mov_b32 v{V_ONES+1}, 1.0")
e(f"  v_mov_b32 v{V_ONE}, 1")
e(f"  s_mov_b32 s45, {CH*8}")
e("  v_lshlrev_b32 v55, 1, v52")
e("  s_waitcnt lgkmcnt(0)")
stamp(1)
e("  s_barrier")
stamp(2)
e(f"  v_cmp_gt_u32 vcc, {NW-192}, v3")
e("  s_waitcnt vmcnt(3)")
e("  v_cndmask_b32 v7, 0, v7, vcc")
for r in range(4):
    e(f"  v_add_u32 v53, {64*r}, v3")
    e(f"  v_mul_lo_u32 v53, v53, s45")
    e(f"  v_and_b32 v54, 0xffff, v{4+r}")
    e(f"  v_add_u32 v54, v54, v55")
    e(f"  v_lshl_add_u32 v{V_RB+r}, v54, 3, v53")
    e(f"  v_lshrrev_b32 v{4+r}, 16, v{4+r}")
    e(f"  v_sub_u32 v{V_REM+r}, v{4+r}, v55")
e("  s_mov_b32 s41, 0")

def rec_loads():
    e("  s_lshl_b32 s50, s41, 3")
    e("  s_add_u32 s52, s41, 1")
    for r in range(4):
        for sub in range(2):
            k = r*2+sub
            e(f"  v_cmp_lt_i32 s[{56+2*k}:{57+2*k}], s{41 if sub==0 else 52}, v{V_REM+r}")
    e("  s_nop 3")
    for r in range(4):
        e(f"  s_or_b64 exec, s[{56+4*r}:{57+4*r}], 1")
        e(f"  buffer_load_dwordx4 v[{16+4*r}:{19+4*r}], v{V_RB+r}, s[16:19], s50 offen")
    e("  s_mov_b64 exec, -1")

rec_loads()
e("  v_max_u32 v4, v4, v5")
e("  v_max_u32 v6, v6, v7")
e("  v_max_u32 v4, v4, v6")
e("  s_nop 1")
e("  v_max_u32_dpp v4, v4, v4 row_bcast:15 row_mask:0xa bank_mask:0xf")
e("  s_nop 1")
e("  v_max_u32_dpp v4, v4, v4 row_bcast:31 row_mask:0xc bank_mask:0xf")
e("  s_nop 1")
e("  v_readlane_b32 s44, v4, 63")
e("  s_nop 3")
e("  v_mov_b32 v4, s44")
e(f"  v_mov_b32 v53, {L_MAX}")
e("  s_mov_b64 exec, 1")
e("  ds_max_u32 v53, v4")
e("  s_mov_b64 exec, -1")
e("  s_cmp_lt_u32 s55, 4")
e(f"  s_mov_b32 s52, {L_AGG}")
e(f"  s_cselect_b32 s52, {L_P}, s52")
e("  s_cselect_b32 s97, s51, 1.0")
e("  s_lshr_b32 s53, s40, 3")
e("  s_lshl_b32 s53, s53, 13")
e("  s_add_u32 s52, s52, s53")
e("  s_and_b32 s54, s55, 3")
e("  s_lshl_b32 s54, s54, 6")
e("  s_add_u32 s52, s52, s54")
e(f"  v_lshlrev_b32 v5, 10, v{V_G4}")
e("  v_lshl_add_u32 v5, v52, 2, v5")
e("  v_add_u32 v5, s52, v5")
e(f"  v_lshlrev_b32 v{V_G4}, 2, v{V_G4}")
e("  v_lshrrev_b32 v54, 4, v0")
e("  v_mul_u32_u24 v54, 144, v54")
e("  v_lshrrev_b32 v53, 1, v1")
e(f"  v_add3_u32 v54, v54, v53, s98")
e("  s_waitcnt vmcnt(4)")
e(f"  v_add_u32 v53, {L_W}, v{V_T16}")
e("  ds_write_b128 v53, v[8:11]")
e("  ds_write_b64 v54, v[12:13]")
e("  s_waitcnt vmcnt(0)")
e("  s_branch B_count")
e("B_layer:")
lds_init(False)
e("  s_waitcnt lgkmcnt(0)")
e("  s_barrier")
rec_loads()
e("  s_waitcnt vmcnt(0)")
e("B_count:")
for k in range(8):
    e(f"  v_lshlrev_b32 v{17+2*k}, 2, v{17+2*k}")
    e(f"  s_mov_b64 exec, s[{56+2*k}:{57+2*k}]")
    e(f"  ds_add_rtn_u32 v{32+k}, v{17+2*k}, v{V_ONE} offset:{L_CNT}")
    e("  s_mov_b64 exec, -1")
e("  s_waitcnt lgkmcnt(0)")
stamp(3)
e("  s_barrier")
stamp(4)
e("  v_lshlrev_b32 v52, 2, v2")
e(f"  ds_read_b32 v53, v52 offset:{L_CNT}")
e(f"  v_mov_b32 v52, {L_MAX}")
e("  ds_read_b32 v54, v52")
e(f"  v_cmp_gt_u32 vcc, {NPB}, v2")
e("  s_waitcnt lgkmcnt(0)")
e("  v_readfirstlane_b32 s42, v54")
e("  v_cndmask_b32 v53, 0, v53, vcc")
e("  v_add_u32 v53, 3, v53")
e("  v_lshrrev_b32 v53, 2, v53")
e("  v_mov_b32 v54, v53")
dpp_scan(54)
e(f"  v_sub_u32 v{V_START}, v54, v53")
e("  v_readlane_b32 s43, v54, 63")
for k in range(8):
    e(f"  ds_bpermute_b32 v{72+k}, v{17+2*k}, v{V_START}")
e("  s_waitcnt lgkmcnt(0)")
for k in range(8):
    e(f"  v_lshl_add_u32 v{72+k}, v{72+k}, 2, v{32+k}")
    e(f"  v_lshlrev_b32 v{72+k}, 2, v{72+k}")
    e(f"  s_mov_b64 exec, s[{56+2*k}:{57+2*k}]")
    e(f"  ds_write_b32 v{72+k}, v{16+2*k} offset:{L_LIST}")
    e("  s_mov_b64 exec, -1")
e("  s_cmp_lg_u32 s41, 0")
e("  s_cbranch_scc1 B_nomfma")
e("  v_bfe_u32 v53, v0, 2, 2")
e("  v_bfe_u32 v54, v0, 4, 2")
e("  v_lshl_add_u32 v53, v54, 3, v53")
e("  v_lshlrev_b32 v53, 7, v53")
e("  v_and_b32 v54, 3, v0")
e("  v_lshl_add_u32 v53, v54, 3, v53")
e("  s_lshr_b32 s52, s55, 2")
e("  s_lshl_b32 s52, s52, 13")
e("  s_and_b32 s54, s55, 3")
e("  s_lshl_b32 s54, s54, 5")
e("  s_add_u32 s52, s52, s54")
e(f"  s_add_u32 s52, s52, {L_W}")
e("  v_add_u32 v53, s52, v53")
for sidx in range(2):
    for hh in range(2):
        e(f"  ds_read_b64_tr_b16 v[{8+4*sidx+2*hh}:{9+4*sidx+2*hh}], v53 offset:{sidx*4096 + hh*512}")
e("  v_and_b32 v53, 15, v0")
e("  s_lshr_b32 s52, s40, 3")
e("  s_lshl_b32 s52, s52, 5")
e("  v_add_u32 v53, s52, v53")
e("  v_mul_u32_u24 v53, 144, v53")
e("  v_bfe_u32 v54, v0, 4, 2")
e("  v_lshl_add_u32 v53, v54, 4, v53")
e("  v_add_u32 v53, s98, v53")
e("  ds_read_b128 v[56:59], v53")
e("  ds_read_b128 v[60:63], v53 offset:64")
e(f"  ds_read_b128 v[64:67], v53 offset:{16*144}")
e(f"  ds_read_b128 v[68:71], v53 offset:{16*144+64}")
e("  s_waitcnt vmcnt(0) lgkmcnt(0)")
e("  v_mfma_f32_16x16x32_bf16 v[80:83], v[56:59], v[8:11], 0")
e("  v_mfma_f32_16x16x32_bf16 v[84:87], v[64:67], v[8:11], 0")
e("  v_mfma_f32_16x16x32_bf16 v[80:83], v[60:63], v[12:15], v[80:83]")
e("  v_mfma_f32_16x16x32_bf16 v[84:87], v[68:71], v[12:15], v[84:87]")
e("  s_nop 7")
e("  s_nop 1")
for i in range(8):
    e(f"  v_mul_f32 v{80+i}, s97, v{80+i}")
for i in range(4):
    e(f"  ds_write_b32 v5, v{80+i} offset:{i*256}")
    e(f"  ds_write_b32 v5, v{84+i} offset:{4096+i*256}")
e("  v_lshlrev_b32 v12, 16, v44")
e("  v_and_b32 v13, s49, v44")
e("  v_lshlrev_b32 v14, 16, v45")
e("  v_and_b32 v15, s49, v45")
for i in range(4):
    e(f"  v_mul_f32 v{12+i}, s51, v{12+i}")
e("B_nomfma:")
e("  s_waitcnt lgkmcnt(0)")
stamp(5)
e("  s_barrier")
stamp(6)
e("  s_mul_i32 s44, s43, s40")
e("  s_lshr_b32 s44, s44, 4")
e("  s_add_u32 s45, s40, 1")
e("  s_mul_i32 s45, s43, s45")
e("  s_lshr_b32 s45, s45, 4")
e("  s_cmp_eq_u32 s44, s45")
e("  s_cbranch_scc1 B_loop_end")
e("  s_lshl_b32 s50, s44, 4")
e(f"  v_add_u32 v{V_EADDR}, s50, v{V_G4}")
if OPT['prio']:
    e("  s_sub_u32 s50, s45, s44")
    fr = [(16, 32, 48), (32, 48, 58), (26, 45, 58), (20, 38, 54)][OPT['pq']]
    for rr, f in zip((52, 53, 54), fr):
        e(f"  s_mul_i32 s{rr}, s50, {f}")
        e(f"  s_lshr_b32 s{rr}, s{rr}, 6")
        e(f"  s_add_u32 s{rr}, s{rr}, s44")
    e("  s_setprio 3")

def node_setup():
    e(f"  v_cmp_ge_u32 vcc, s44, v{V_START}")
    e("  s_nop 3")
    e("  s_bcnt1_i32_b64 s47, vcc")
    e(f"  v_readlane_b32 s46, v{V_START}, s47")
    e("  s_sub_u32 s47, s47, 1")
    e("  s_lshl_b32 s50, s47, 8")
    e(f"  v_add_u32 v{V_FL}, s50, v1")
    e(f"  ds_read_b128 v[40:43], v{V_FL} offset:{L_P}")
    e("  s_min_u32 s46, s46, s45")
    e("  v_mov_b32 v44, 0")
    e("  v_mov_b32 v45, 0")
    e("  v_mov_b32 v46, 0")
    e("  v_mov_b32 v47, 0")
    e("  s_waitcnt lgkmcnt(0)")

def flush():
    e("  s_nop 1")
    e("  v_permlane32_swap_b32 v44, v46")
    e("  v_permlane32_swap_b32 v45, v47")
    e("  s_nop 1")
    e("  v_add_f32 v44, v44, v46")
    e("  v_add_f32 v45, v45, v47")
    e("  s_nop 1")
    e("  v_permlane16_swap_b32 v44, v45")
    e("  s_nop 1")
    e("  v_add_f32 v44, v44, v45")
    e(f"  v_add_u32 v{V_FL}, v{V_FL}, v{V_G4}")
    e(f"  ds_add_f32 v{V_FL}, v44 offset:{L_AGG}")

def row_load(k, m):
    if not OPT['noload']:
        e(f"  buffer_load_dwordx4 v[{R[k]}:{R[k]+3}], v[{IDX[m]}:{IDX[m]+1}], s[12:15], 0 idxen offen")

for half in range(2):
    for m in range(4):
        e(f"  ds_read_u16 v{IDX[m]}, v{V_EADDR} offset:{L_LIST + 16*(4*half+m)}")
    e("  s_waitcnt lgkmcnt(0)")
    for m in range(4):
        row_load(4*half+m, m)
for m in range(4):
    e(f"  ds_read_u16 v{IDX[m]}, v{V_EADDR} offset:{L_LIST + 16*(8+m)}")
    e(f"  ds_read_u16_d16_hi v{EV[m]}, v{V_EADDR} offset:{L_LIST + 16*m + 2}")
node_setup()

def compute(k):
    r = R[k]; ev = EV[k]
    e(f"  v_pk_fma_f32 v[48:49], v[{ev}:{ev+1}], v[12:13], v[40:41] op_sel_hi:[0,1,1]")
    e(f"  v_pk_fma_f32 v[50:51], v[{ev}:{ev+1}], v[14:15], v[42:43] op_sel_hi:[0,1,1]")
    if OPT['dot2']:
        for i in range(4):
            e(f"  v_dot2_f32_bf16 v{48+i}, v{r+i}, s48, v{48+i}")
    else:
        for i in range(4):
            e(f"  v_lshlrev_b32 v{52+i}, 16, v{r+i}")
        e("  v_pk_add_f32 v[48:49], v[48:49], v[52:53]")
        e("  v_pk_add_f32 v[50:51], v[50:51], v[54:55]")
    for i in range(4):
        e(f"  v_exp_f32 v{48+i}, v{48+i}")
    e(f"  v_pk_add_f32 v[48:49], v[48:49], v[{V_ONES}:{V_ONES+1}]")
    e(f"  v_pk_add_f32 v[50:51], v[50:51], v[{V_ONES}:{V_ONES+1}]")
    for i in range(4):
        e(f"  v_rcp_f32 v{48+i}, v{48+i}")
    if OPT['nomask']:
        e(f"  v_pk_fma_f32 v[44:45], v[{r}:{r+1}], v[48:49], v[44:45]")
        e(f"  v_pk_fma_f32 v[46:47], v[{r+2}:{r+3}], v[50:51], v[46:47]")
    else:
        for i in range(4):
            e(f"  v_and_b32 v{52+i}, s49, v{r+i}")
        e("  v_pk_fma_f32 v[44:45], v[52:53], v[48:49], v[44:45]")
        e("  v_pk_fma_f32 v[46:47], v[54:55], v[50:51], v[46:47]")

e("B_loop:")
if OPT['prio']:
    e("  s_cmp_ge_u32 s44, s52")
    e("  s_cbranch_scc0 B_prio_done")
    e("  s_setprio 2")
    e("  s_cmp_ge_u32 s44, s53")
    e("  s_cbranch_scc0 B_prio_done")
    e("  s_setprio 1")
    e("  s_cmp_ge_u32 s44, s54")
    e("  s_cbranch_scc0 B_prio_done")
    e("  s_setprio 0")
    e("B_prio_done:")
for k in range(8):
    e("  s_cmp_eq_u32 s44, s46")
    e(f"  s_cbranch_scc1 B_switch{k}")
    e(f"B_cont{k}:")
    e("  s_waitcnt vmcnt(7) lgkmcnt(6)")
    if not OPT['nocomp']:
        compute(k)
    else:
        e(f"  v_add_f32 v44, v44, v{R[k]}")
    row_load(k, k % 4)
    e(f"  ds_read_u16 v{IDX[k%4]}, v{V_EADDR} offset:{L_LIST + 16*(k+12)}")
    e(f"  ds_read_u16_d16_hi v{EV[(k+4)%8]}, v{V_EADDR} offset:{L_LIST + 16*(k+4) + 2}")
    e("  s_add_u32 s44, s44, 1")
e(f"  v_add_u32 v{V_EADDR}, 128, v{V_EADDR}")
e("  s_branch B_loop")
for k in range(8):
    e(f"B_switch{k}:")
    flush()
    e("  s_cmp_eq_u32 s44, s45")
    e("  s_cbranch_scc1 B_loop_end")
    node_setup()
    e(f"  s_branch B_cont{k}")
e("B_loop_end:")
e("  s_setprio 0")
e("  s_waitcnt vmcnt(0) lgkmcnt(0)")
stamp(7) if OPT['stamp']!=2 else None
e("  s_barrier")
stamp(8) if OPT['stamp']!=2 else None
e("  s_add_u32 s41, s41, 32")
e("  s_cmp_lt_u32 s41, s42")
e("  s_cbranch_scc1 B_layer")
e(f"  v_cmp_gt_u32 vcc, {NPB*16}, v0")
e("  s_and_saveexec_b64 s[54:55], vcc")
e("  s_cbranch_execz B_epi_end")
e(f"  ds_read_b128 v[40:43], v{V_T16} offset:{L_AGG}")
e("  s_waitcnt lgkmcnt(0)")
for i in range(4):
    e(f"  v_mul_f32 v{44+i}, s51, v{40+i}")
for i in range(4):
    e(f"  v_exp_f32 v{44+i}, v{44+i}")
e("  s_nop 0")
for i in range(4):
    e(f"  v_add_f32 v{44+i}, 1.0, v{44+i}")
for i in range(4):
    e(f"  v_rcp_f32 v{44+i}, v{44+i}")
e("  s_nop 0")
for i in range(4):
    e(f"  v_mul_f32 v{40+i}, v{40+i}, v{44+i}")
e("  v_cvt_pk_bf16_f32 v48, v40, v41")
e("  v_cvt_pk_bf16_f32 v49, v42, v43")
e("  v_lshlrev_b32 v50, 3, v0")
e(f"  s_mul_i32 s52, s2, {NPB*128}")
e("  buffer_store_dwordx2 v[48:49], v50, s[32:35], s52 offen" + ['', ' sc1', ' nt'][OPT['outflag']])
e("B_epi_end:")
if OPT['stamp'] in (1, 2):
    e("  s_waitcnt vmcnt(0)")
    stamp(9) if OPT['stamp']!=2 else None
    stamp_dump(10, 100)
    e("  s_mov_b64 exec, -1")
    e("  s_cmp_eq_u32 s2, 100")
    e("  s_cbranch_scc0 B_done")
    e("  s_load_dwordx2 s[92:93], s[0:1], 64")
    e("  s_waitcnt lgkmcnt(0)")
    e("  s_mov_b32 s94, 4096")
    e("  s_mov_b32 s95, 0x20000")
    e("  s_lshl_b32 s98, s40, 4")
    e("  s_add_u32 s98, s98, 64")
    e("  v_mov_b32 v1, s98")
    for i, st in enumerate((0, 1, 3, 7) if OPT['stamp']!=2 else (8, 9, 7, 1)):
        e(f"  s_sub_u32 s99, s{72+2*st}, s72")
        e(f"  v_mov_b32 v{4+i}, s99")
    e("  buffer_store_dwordx4 v[4:7], v1, s[92:95], 0 offen")
if OPT['rt']:
    e("  s_waitcnt vmcnt(0)")
    e("  s_mov_b64 exec, -1")
    e("  s_memrealtime s[92:93]")
    e("  s_load_dwordx2 s[94:95], s[0:1], 72")
    e("  s_waitcnt lgkmcnt(0)")
    e("  s_add_u32 s88, s94, 33619968")
    e("  s_addc_u32 s89, s95, 0")
    e("  s_mov_b32 s90, 0x10000")
    e("  s_mov_b32 s91, 0x20000")
    e("  v_lshrrev_b32 v1, 6, v0")
    e("  v_lshlrev_b32 v1, 3, v1")
    e("  s_lshl_b32 s98, s99, 7")
    e("  v_add_u32 v1, s98, v1")
    e("  v_mov_b32 v2, s100")
    e("  v_mov_b32 v3, s92")
    e("  s_mov_b64 exec, 1")
    e("  buffer_store_dwordx2 v[2:3], v1, s[88:91], 0 offen")
e("B_done:")
e("  s_endpgm")

e('.section .rodata,"a"')
for name, vg, sg in (("prep_kernel", 88, 72 if OPT['rt'] else 56), ("agg_kernel", 128, 100)):
    if OPT['stamp'] or (OPT['rt'] and name == 'agg_kernel'):
        sg = 102
    e(".p2align 6")
    e(f".amdhsa_kernel {name}")
    e(f"  .amdhsa_next_free_vgpr {vg}")
    e(f"  .amdhsa_next_free_sgpr {sg}")
    e(f"  .amdhsa_accum_offset {vg}")
    e("  .amdhsa_group_segment_fixed_size 0")
    e("  .amdhsa_kernarg_size 80")
    e("  .amdhsa_user_sgpr_count 2")
    e("  .amdhsa_user_sgpr_kernarg_segment_ptr 1")
    e("  .amdhsa_system_sgpr_workgroup_id_x 1")
    e(".end_amdhsa_kernel")

path = OPT.get('out', None)
open(OUTPATH, 'w').write('\n'.join(x for x in out if x is not None) + '\n')
```

```python
import sys

N = 12500
NB = 250
NPB = 50
CH = 3200
NW = 250
NG = 49
QH_OFF = 0
P_OFF = 0x400000
U_OFF = 0x800000
REC_OFF = 0xC00000
OFFS_OFF = 0x1400000
FR_OFF = 0x1500000
NLOG2E = 0xBFB8AA3B

OPT = dict(dot2=False, nomask=False, stamp=0, noload=0, nocomp=0, noflush=0, nodsr=0, stflag=1, outflag=1, pq=0, pair=0, soffs=0, warm2=2, warm3=0, rt=0, prio=1, warm=0, emptyA=0, emptyB=0, w0=0, bslot=0)
OUTPATH = 'standalone__edge_featured_mpnn_egc__graph.s'
for a in sys.argv[1:]:
    if '=' in a:
        k, v = a.split('=')
        if k == 'out':
            OUTPATH = v
        else:
            OPT[k] = int(v)

out = []
STF = ['', ' sc1', ' nt', ' sc0 sc1'][OPT['stflag']]
import re
def e(s=''):
    if s.lstrip().startswith('buffer_'):
        m = re.search(r'offset:(\d+)', s)
        assert not m or int(m.group(1)) < 4096, s
    if s.lstrip().startswith('ds_'):
        m = re.search(r'offset:(\d+)', s)
        assert not m or int(m.group(1)) < 65536, s
    out.append(s)

HEADER = """; Kernarg layout for this problem (80 bytes, ptrs only, base s[0:1]):
;   offset   0: d_in[0] x  shape=(12500, 64) dtype=bfloat16
;   offset   8: d_in[1] e_attr  shape=(800000, 1) dtype=bfloat16
;   offset  16: d_in[2] src  shape=(800000,) dtype=int32
;   offset  24: d_in[3] dst  shape=(800000,) dtype=int32
;   offset  32: d_in[4] u_w  shape=(64, 64) dtype=bfloat16
;   offset  40: d_in[5] v_w  shape=(64, 64) dtype=bfloat16
;   offset  48: d_in[6] g_w  shape=(129, 64) dtype=bfloat16
;   offset  56: d_out     shape=(12500, 64) dtype=bfloat16
;   offset  64: d_debug   256 bytes
;   offset  72: d_ws      268435456 bytes workspace
; @launch kernel=prep_kernel grid=(%d,1,1) block=(1024,1,1) lds=55296
; @launch kernel=agg_kernel grid=(%d,1,1) block=(1024,1,1) lds=93184
.amdgcn_target "amdgcn-amd-amdhsa--gfx950"
.text""" % (NW, NB)
e(HEADER)

def srd(d, lo, hi, size, add=None):
    if add is None:
        e(f"  s_mov_b32 s{d}, s{lo}")
        e(f"  s_mov_b32 s{d+1}, s{hi}")
    else:
        e(f"  s_add_u32 s{d}, s{lo}, {add}")
        e(f"  s_addc_u32 s{d+1}, s{hi}, 0")
    e(f"  s_mov_b32 s{d+2}, {size}")
    e(f"  s_mov_b32 s{d+3}, 0x20000")

KERN = ['A']
def stamp(idx):
    if not OPT['stamp']:
        return
    if (KERN[0] == 'A') != (OPT['stamp'] >= 3):
        return
    e(f"  s_memtime s[{72+2*idx}:{73+2*idx}]")
    e("  s_waitcnt lgkmcnt(0)")

def stamp_dump(nst, wg):
    if not OPT['stamp']:
        return
    if (KERN[0] == 'A') != (OPT['stamp'] >= 3):
        return
    lab = f"stamp_skip_{len(out)}"
    e("  s_mov_b64 exec, -1")
    e("  v_readfirstlane_b32 s98, v0")
    e("  s_nop 3")
    e(f"  s_cmp_eq_u32 s2, {wg}")
    e(f"  s_cbranch_scc0 {lab}")
    e("  s_cmp_eq_u32 s98, 0")
    e(f"  s_cbranch_scc0 {lab}")
    e("  s_load_dwordx2 s[92:93], s[0:1], 64")
    e("  s_waitcnt lgkmcnt(0)")
    e("  s_mov_b32 s94, 256")
    e("  s_mov_b32 s95, 0x20000")
    e("  v_mov_b32 v1, 0")
    for i in range(1, nst):
        e(f"  s_sub_u32 s98, s{72+2*i}, s72")
        e("  v_mov_b32 v2, s98")
        e(f"  buffer_store_dword v2, v1, s[92:95], 0 offen offset:{4*i}")
    e(f"{lab}:")

def dpp_scan(v):
    for sh in (1, 2, 4, 8):
        e("  s_nop 1")
        e(f"  v_add_u32_dpp v{v}, v{v}, v{v} row_shr:{sh} row_mask:0xf bank_mask:0xf bound_ctrl:0")
    e("  s_nop 1")
    e(f"  v_add_u32_dpp v{v}, v{v}, v{v} row_bcast:15 row_mask:0xa bank_mask:0xf")
    e("  s_nop 1")
    e(f"  v_add_u32_dpp v{v}, v{v}, v{v} row_bcast:31 row_mask:0xc bank_mask:0xf")
    e("  s_nop 1")

LW0 = 36864
LW1 = LW0 + 9216
LDS_A = LW1 + 9216

def rt_endA():
    if OPT['rt']:
        e("  s_waitcnt vmcnt(0)")
        e("  s_mov_b64 exec, -1")
        e("  s_memrealtime s[56:57]")
        e("  s_load_dwordx2 s[58:59], s[0:1], 72")
        e("  s_waitcnt lgkmcnt(0)")
        e("  s_add_u32 s52, s58, 0x2000000")
        e("  s_addc_u32 s53, s59, 0")
        e("  s_mov_b32 s54, 0x10000")
        e("  s_mov_b32 s55, 0x20000")
        e("  v_lshrrev_b32 v1, 6, v0")
        e("  v_lshlrev_b32 v1, 3, v1")
        e("  s_lshl_b32 s62, s2, 7")
        e("  v_add_u32 v1, s62, v1")
        e("  v_mov_b32 v2, s64")
        e("  v_mov_b32 v3, s56")
        e("  s_mov_b64 exec, 1")
        e("  buffer_store_dwordx2 v[2:3], v1, s[52:55], 0 offen")

e(".globl prep_kernel")
e(".p2align 8")
e(".type prep_kernel,@function")
e("prep_kernel:")
if OPT['emptyA']:
    e("  s_endpgm")
e(f"  s_cmp_ge_u32 s2, {NW}")
e("  s_cbranch_scc1 A_done")
if OPT['rt']:
    e("  s_memrealtime s[64:65]")
stamp(0)
e("  s_load_dwordx16 s[4:19], s[0:1], 0")
e("  s_load_dwordx2 s[20:21], s[0:1], 72")
e("  v_lshrrev_b32 v1, 6, v0")
e("  s_nop 0")
e("  v_readfirstlane_b32 s23, v1")
e("  s_nop 3")
e("  s_cmp_ge_u32 s23, 8")
e("  s_cbranch_scc1 A_gemm")
e("  s_cmp_eq_u32 s23, 7")
e("  s_cbranch_scc1 A_done")
D0, S0, E0, PR, AD, RK, BS = 8, 16, 24, 28, 44, 52, 60
e("  s_waitcnt lgkmcnt(0)")
e(f"  s_mul_i32 s22, s2, {CH*4}")
srd(24, 10, 11, CH*4, "s22")
srd(28, 8, 9, CH*4, "s22")
e(f"  s_mul_i32 s22, s2, {CH*2}")
srd(32, 6, 7, CH*2, "s22")
e("  v_lshlrev_b32 v1, 4, v0")
e("  v_lshlrev_b32 v2, 5, v0")
e(f"  v_cmp_gt_u32 vcc, {CH//8}, v0")
e("  s_mov_b64 s[44:45], vcc")
e("  s_mov_b64 exec, s[44:45]")
e(f"  buffer_load_dwordx4 v[{D0}:{D0+3}], v2, s[24:27], 0 offen")
e(f"  buffer_load_dwordx4 v[{D0+4}:{D0+7}], v2, s[24:27], 0 offen offset:16")
e(f"  buffer_load_dwordx4 v[{S0}:{S0+3}], v2, s[28:31], 0 offen")
e(f"  buffer_load_dwordx4 v[{S0+4}:{S0+7}], v2, s[28:31], 0 offen offset:16")
e(f"  buffer_load_dwordx4 v[{E0}:{E0+3}], v1, s[32:35], 0 offen")
e("  s_mov_b64 exec, -1")
e(f"  s_mul_i32 s22, s2, {CH*8}")
e(f"  s_add_u32 s22, s22, {REC_OFF}")
srd(36, 20, 21, CH*8, "s22")
srd(40, 20, 21, 256*1024, OFFS_OFF)
e("  s_mov_b32 s48, 0xffff0000")
e("  s_and_b32 s49, s2, 63")
e("  s_lshl_b32 s49, s49, 4")
e("  s_lshr_b32 s50, s2, 6")
e("  s_lshl_b32 s50, s50, 2")
e("  s_add_u32 s49, s49, s50")
e("  v_lshlrev_b32 v3, 2, v0")
e("  v_mov_b32 v4, 0")
e("  v_mov_b32 v5, 1")
e("  ds_write_b32 v3, v4")
e("  s_waitcnt lgkmcnt(0)")
stamp(1)
e("  s_barrier")
stamp(2)
e("  s_mov_b64 exec, s[44:45]")
e("  s_waitcnt vmcnt(3)")
for i in range(8):
    e(f"  v_mul_u32_u24 v{AD+i}, 5243, v{D0+i}")
    e(f"  v_lshrrev_b32 v{AD+i}, 18, v{AD+i}")
    e(f"  v_mul_u32_u24 v{BS+i}, {NPB}, v{AD+i}")
    e(f"  v_sub_u32 v{PR+1+2*i}, v{D0+i}, v{BS+i}")
    e(f"  v_lshlrev_b32 v{AD+i}, 2, v{AD+i}")
    e(f"  ds_add_rtn_u32 v{RK+i}, v{AD+i}, v5")
e("  s_mov_b64 exec, -1")
e("  s_waitcnt lgkmcnt(0)")
stamp(3)
e("  s_barrier")
stamp(4)
e("  s_cmp_lg_u32 s23, 0")
e("  s_cbranch_scc1 A_skip3")
e("  ds_read_b128 v[72:75], v1")
e("  s_waitcnt lgkmcnt(0)")
e("  v_add_u32 v77, v72, v73")
e("  v_add_u32 v78, v77, v74")
e("  v_add_u32 v79, v78, v75")
e("  v_mov_b32 v80, v79")
dpp_scan(80)
e("  v_sub_u32 v68, v80, v79")
e("  v_add_u32 v69, v68, v72")
e("  v_add_u32 v70, v68, v77")
e("  v_add_u32 v71, v68, v78")
e("  ds_write_b128 v1, v[68:71] offset:1024")
e("  v_lshlrev_b32 v81, 12, v0")
for i in range(4):
    e(f"  v_lshl_or_b32 v{72+i}, v{72+i}, 16, v{68+i}")
    e(f"  buffer_store_dword v{72+i}, v81, s[40:43], s49 offen offset:{i*1024}")
e("A_skip3:")
e("  s_waitcnt lgkmcnt(0)")
stamp(5)
e("  s_barrier")
stamp(6)
e("  s_mov_b64 exec, s[44:45]")
for i in range(8):
    e(f"  ds_read_b32 v{BS+i}, v{AD+i} offset:1024")
e("  s_waitcnt vmcnt(0)")
for i in range(4):
    e(f"  v_lshl_or_b32 v{PR+4*i}, v{E0+i}, 16, v{S0+2*i}")
    e(f"  v_and_or_b32 v{PR+4*i+2}, v{E0+i}, s48, v{S0+2*i+1}")
e("  s_waitcnt lgkmcnt(0)")
for i in range(8):
    e(f"  v_add_lshl_u32 v{BS+i}, v{BS+i}, v{RK+i}, 3")
    e(f"  ds_write_b64 v{BS+i}, v[{PR+2*i}:{PR+1+2*i}] offset:2048")
e("  s_mov_b64 exec, -1")
e("  s_waitcnt lgkmcnt(0)")
stamp(7)
e("  s_barrier")
stamp(8)
for i in range(4):
    e(f"  ds_read_b128 v[{8+4*i}:{11+4*i}], v1 offset:{2048+448*16*i}")
for i in range(4):
    e(f"  s_movk_i32 s50, {448*16*i}")
    e(f"  s_waitcnt lgkmcnt({3-i})")
    e(f"  buffer_store_dwordx4 v[{8+4*i}:{11+4*i}], v1, s[36:39], s50 offen" + STF)
if OPT['stamp'] == 3:
    e("  s_waitcnt vmcnt(0)")
    stamp(9)
    stamp_dump(10, 100)
rt_endA()
e("  s_endpgm")

e("A_gemm:")
e("  s_waitcnt lgkmcnt(0)")
e("  s_sub_u32 s23, s23, 8")
e("  s_add_u32 s24, s16, 8192")
e("  s_addc_u32 s25, s17, 0")
e("  s_mov_b32 s26, 8192")
e("  s_mov_b32 s27, 0x20000")
srd(36, 14, 15, 8192)
srd(28, 4, 5, N*128)
srd(32, 20, 21, N*256, QH_OFF)
e("  v_subrev_u32 v1, 512, v0")
e("  v_lshlrev_b32 v2, 4, v1")
e("  buffer_load_dwordx4 v[24:27], v2, s[24:27], 0 offen")
e("  buffer_load_dwordx4 v[28:31], v2, s[36:39], 0 offen")
e(f"  s_mul_i32 s44, s2, {NPB}")
e("  s_lshr_b32 s45, s23, 1")
e("  s_lshl_b32 s45, s45, 4")
e("  s_add_u32 s44, s44, s45")
e("  v_and_b32 v3, 15, v0")
e("  v_bfe_u32 v4, v0, 4, 2")
e("  v_add_u32 v5, s44, v3")
e("  v_lshlrev_b32 v5, 7, v5")
e("  v_lshl_add_u32 v5, v4, 4, v5")
e("  buffer_load_dwordx4 v[16:19], v5, s[28:31], 0 offen")
e("  buffer_load_dwordx4 v[20:23], v5, s[28:31], 0 offen offset:64")
e("  s_barrier")
e("  v_bfe_u32 v6, v0, 2, 2")
e("  v_lshl_add_u32 v6, v4, 3, v6")
e("  v_lshlrev_b32 v6, 7, v6")
e("  v_and_b32 v7, 3, v0")
e("  v_lshl_add_u32 v6, v7, 3, v6")
e("  s_and_b32 s45, s23, 1")
e("  s_lshl_b32 s47, s45, 6")
e("  v_add_u32 v6, s47, v6")
e("  v_lshl_add_u32 v7, v4, 2, s44")
e("  v_lshlrev_b32 v7, 8, v7")
e("  v_lshl_add_u32 v7, v3, 2, v7")
e("  s_lshl_b32 s47, s45, 7")
e("  v_add_u32 v7, s47, v7")
e(f"  s_mov_b32 s46, 0x{NLOG2E:08x}")
e("  s_waitcnt vmcnt(2)")
e(f"  ds_write_b128 v2, v[24:27] offset:{LW0}")
e(f"  ds_write_b128 v2, v[28:31] offset:{LW1}")
e("  s_waitcnt lgkmcnt(0)")
e("  s_barrier")
for j in range(2):
    for mi, base in ((LW0, 24), (LW1, 32)):
        for sidx in range(2):
            for hh in range(2):
                e(f"  ds_read_b64_tr_b16 v[{base+16*j+4*sidx+2*hh}:{base+16*j+4*sidx+2*hh+1}], v6 offset:{mi + j*32 + sidx*4096 + hh*512}")
e("  s_waitcnt vmcnt(0) lgkmcnt(0)")
for j in range(2):
    A0 = 56 + 8*j
    e(f"  v_mfma_f32_16x16x32_bf16 v[{A0}:{A0+3}], v[16:19], v[{24+16*j}:{27+16*j}], 0")
    e(f"  v_mfma_f32_16x16x32_bf16 v[{A0+4}:{A0+7}], v[16:19], v[{32+16*j}:{35+16*j}], 0")
    e(f"  v_mfma_f32_16x16x32_bf16 v[{A0}:{A0+3}], v[20:23], v[{28+16*j}:{31+16*j}], v[{A0}:{A0+3}]")
    e(f"  v_mfma_f32_16x16x32_bf16 v[{A0+4}:{A0+7}], v[20:23], v[{36+16*j}:{39+16*j}], v[{A0+4}:{A0+7}]")
e("  s_barrier")
e("  s_nop 7")
e("  s_nop 3")
for j in range(2):
    A0 = 56 + 8*j
    for i in range(4):
        e(f"  v_mul_f32 v{A0+i}, s46, v{A0+i}")
    for i in range(4):
        e(f"  v_cvt_pk_bf16_f32 v{72+i}, v{A0+i}, v{A0+4+i}")
    if OPT['nomask']:
        for i in range(4):
            e(f"  v_and_b32 v{72+i}, 0xffff, v{72+i}")
            e(f"  v_and_b32 v{A0+i}, 0x7fffffff, v{A0+4+i}")
            e(f"  v_sub_u32 v{A0+i}, v{A0+i}, v{72+i}")
            e(f"  v_add_u32 v{A0+i}, 0x8000, v{A0+i}")
            e(f"  v_max_i32 v{A0+i}, 0, v{A0+i}")
            e(f"  v_and_b32 v{A0+i}, 0xffff0000, v{A0+i}")
            e(f"  v_and_b32 v{A0+4+i}, 0x80000000, v{A0+4+i}")
            e(f"  v_or3_b32 v{72+i}, v{A0+i}, v{A0+4+i}, v{72+i}")
    for i in range(4):
        e(f"  buffer_store_dword v{72+i}, v7, s[32:35], 0 offen offset:{i*256+j*64}" + STF)
rt_endA()
e("A_done:")
e("  s_endpgm")

KERN[0] = 'B'
L_CNT = 0
L_MAX = 256
L_P = 1024
L_AGG = 17408
L_LIST = 33792
L_W = L_LIST + 32768 + 1024
L_X = L_W + 16384
LDS_B = L_X + 9216

V_G4, V_START, V_EADDR, V_T16, V_RB, V_REM = 88, 89, 90, 91, 92, 96
EV = [100 + 2*k for k in range(8)]
IDX = [116 + 2*m for m in range(4)]
V_FL, V_ONE, V_ONES = 124, 125, 126
R = [56 + 4*k for k in range(8)]

e(".globl agg_kernel")
e(".p2align 8")
e(".type agg_kernel,@function")
e("agg_kernel:")
if OPT['emptyB']:
    e("  s_endpgm")
e(f"  s_cmp_ge_u32 s2, {NB}")
e("  s_cbranch_scc1 B_done")
if OPT['rt']:
    e("  s_memrealtime s[100:101]")
    e("  s_mov_b32 s99, s2")
stamp(0)
e("  s_load_dwordx4 s[4:7], s[0:1], 48")
e("  s_load_dwordx2 s[8:9], s[0:1], 72")
e("  s_load_dwordx2 s[10:11], s[0:1], 0")
e("  s_load_dwordx2 s[46:47], s[0:1], 32")
e("  s_and_b32 s3, s2, 7")
e("  s_lshr_b32 s2, s2, 3")
e("  s_mov_b32 s96, s2")
e("  s_mul_i32 s44, s3, 31")
e("  s_min_u32 s3, s3, 2")
e("  s_add_u32 s2, s2, s44")
e("  s_add_u32 s2, s2, s3")
e("  v_lshrrev_b32 v3, 6, v0")
e("  v_and_b32 v1, 15, v0")
e("  v_readfirstlane_b32 s40, v3")
e("  v_lshlrev_b32 v1, 4, v1")
e("  v_and_b32 v2, 63, v0")
e("  s_waitcnt lgkmcnt(0)")
e("  v_lshrrev_b32 v3, 4, v0")
if OPT['soffs']:
    e("  s_lshl_b32 s50, s2, 10")
    e("  s_lshl_b32 s52, s40, 6")
    e("  s_add_u32 s50, s50, s52")
    e(f"  s_add_u32 s50, s50, {OFFS_OFF}")
    e("  s_add_u32 s20, s8, s50")
    e("  s_addc_u32 s21, s9, 0")
    e("  s_load_dwordx16 s[72:87], s[20:21], 0")
else:
    srd(20, 8, 9, 256*1024, OFFS_OFF)
    e(f"  v_lshlrev_b32 v{V_FL}, 4, v3")
    e("  s_lshl_b32 s50, s2, 10")
    e(f"  buffer_load_dwordx4 v[4:7], v{V_FL}, s[20:23], s50 offen")
e(f"  s_add_u32 s12, s8, {QH_OFF}")
e("  s_addc_u32 s13, s9, 0")
e("  s_or_b32 s13, s13, 0x01000000")
e(f"  s_mov_b32 s14, {N}")
e("  s_mov_b32 s15, 0x20000")
srd(16, 8, 9, NW*CH*8, REC_OFF)
srd(24, 10, 11, N*128)
e("  s_cmp_lt_u32 s40, 8")
e("  s_cselect_b32 s28, s4, s46")
e("  s_cselect_b32 s29, s5, s47")
e("  s_mov_b32 s30, 8192")
e("  s_mov_b32 s31, 0x20000")
srd(32, 6, 7, N*128)
srd(36, 4, 5, 129*128)
e("  s_and_b32 s55, s40, 7")
e(f"  s_mov_b32 s98, {L_X}")
e("  s_mov_b32 s48, 0x3f80")
e("  s_mov_b32 s49, 0xffff0000")
e(f"  s_mov_b32 s51, 0x{NLOG2E:08x}")
e(f"  v_lshlrev_b32 v{V_T16}, 4, v0")
e(f"  v_bfe_u32 v{V_G4}, v0, 4, 2")
e("  v_and_b32 v52, 15, v0")
e("  v_and_b32 v53, 511, v0")
e("  v_lshlrev_b32 v53, 4, v53")
e("  buffer_load_dwordx4 v[8:11], v53, s[28:31], 0 offen")
e(f"  s_mul_i32 s52, s2, {NPB*128}")
e("  v_lshlrev_b32 v53, 3, v0")
e("  buffer_load_dwordx2 v[12:13], v53, s[24:27], s52 offen")
e(f"  v_lshrrev_b32 v{V_EADDR}, 1, v1")
e(f"  v_add_u32 v{V_EADDR}, {128*128}, v{V_EADDR}")
e(f"  buffer_load_dwordx2 v[44:45], v{V_EADDR}, s[36:39], 0 offen")
def lds_init(first):
    e("  v_mov_b32 v48, 0xffff")
    e("  v_mov_b32 v49, 0xffff")
    e("  v_mov_b32 v50, 0xffff")
    e("  v_mov_b32 v51, 0xffff")
    e(f"  ds_write_b128 v{V_T16}, v[48:51] offset:{L_LIST}")
    e(f"  ds_write_b128 v{V_T16}, v[48:51] offset:{L_LIST+16384}")
    e("  v_lshlrev_b32 v53, 4, v2")
    e(f"  v_add_u32 v53, {L_LIST+32768}, v53")
    e("  ds_write_b128 v53, v[48:51]")
    e("  v_lshlrev_b32 v53, 2, v2")
    e("  v_mov_b32 v54, 0")
    e(f"  ds_write_b32 v53, v54 offset:{L_CNT}")
    if first:
        e(f"  v_mov_b32 v53, {L_MAX}")
        e("  s_mov_b64 exec, 1")
        e("  ds_write_b32 v53, v54")
        e("  s_mov_b64 exec, -1")

lds_init(True)
for k in range(8):
    e(f"  v_mov_b32 v{EV[k]}, 0")
for m in range(4):
    e(f"  v_mov_b32 v{IDX[m]+1}, v1")
e(f"  v_mov_b32 v{V_ONES}, {'0x2f800000' if OPT['pair'] else '1.0'}")
e(f"  v_mov_b32 v{V_ONES+1}, {'0x2f800000' if OPT['pair'] else '1.0'}")
e(f"  v_mov_b32 v{V_ONE}, 1")
e(f"  s_mov_b32 s45, {CH*8}")
e("  v_lshlrev_b32 v55, 1, v52")
e("  s_waitcnt lgkmcnt(0)")
stamp(1)
e("  s_barrier")
stamp(2)
e(f"  v_cmp_gt_u32 vcc, {NW-192}, v3")
if OPT['soffs']:
    e("  s_mov_b64 s[88:89], vcc")
    e("  v_bfe_u32 v53, v0, 4, 2")
    e("  v_cmp_eq_u32 s[90:91], 1, v53")
    e("  v_cmp_eq_u32 s[92:93], 2, v53")
    e("  v_cmp_eq_u32 s[94:95], 3, v53")
    for r in range(4):
        e(f"  v_mov_b32 v{4+r}, s{72+r}")
    for g in range(1, 4):
        for r in range(4):
            e(f"  v_mov_b32 v53, s{72+4*g+r}")
            e(f"  v_cndmask_b32 v{4+r}, v{4+r}, v53, s[{88+2*g}:{89+2*g}]")
    e("  v_cndmask_b32 v7, 0, v7, s[88:89]")
else:
    e("  s_waitcnt vmcnt(3)")
    e("  s_nop 0")
    e("  v_cndmask_b32 v7, 0, v7, vcc")
for r in range(4):
    e(f"  v_add_u32 v53, {64*r}, v3")
    e(f"  v_mul_lo_u32 v53, v53, s45")
    e(f"  v_and_b32 v54, 0xffff, v{4+r}")
    e(f"  v_add_u32 v54, v54, v55")
    e(f"  v_lshl_add_u32 v{V_RB+r}, v54, 3, v53")
    e(f"  v_lshrrev_b32 v{4+r}, 16, v{4+r}")
    e(f"  v_sub_u32 v{V_REM+r}, v{4+r}, v55")
e("  s_mov_b32 s41, 0")

def rec_loads():
    e("  s_lshl_b32 s50, s41, 3")
    e("  s_add_u32 s52, s41, 1")
    for r in range(4):
        for sub in range(2):
            k = r*2+sub
            e(f"  v_cmp_lt_i32 s[{56+2*k}:{57+2*k}], s{41 if sub==0 else 52}, v{V_REM+r}")
    e("  s_nop 3")
    for r in range(4):
        e(f"  s_or_b64 exec, s[{56+4*r}:{57+4*r}], 1")
        e(f"  buffer_load_dwordx4 v[{16+4*r}:{19+4*r}], v{V_RB+r}, s[16:19], s50 offen")
    e("  s_mov_b64 exec, -1")

rec_loads()
e("  v_max_u32 v4, v4, v5")
e("  v_max_u32 v6, v6, v7")
e("  v_max_u32 v4, v4, v6")
e("  s_nop 1")
e("  v_max_u32_dpp v4, v4, v4 row_bcast:15 row_mask:0xa bank_mask:0xf")
e("  s_nop 1")
e("  v_max_u32_dpp v4, v4, v4 row_bcast:31 row_mask:0xc bank_mask:0xf")
e("  s_nop 1")
e("  v_readlane_b32 s44, v4, 63")
e("  s_nop 3")
e("  v_mov_b32 v4, s44")
e(f"  v_mov_b32 v53, {L_MAX}")
e("  s_mov_b64 exec, 1")
e("  ds_max_u32 v53, v4")
e("  s_mov_b64 exec, -1")
e("  s_cmp_lt_u32 s55, 4")
e(f"  s_mov_b32 s52, {L_AGG}")
e(f"  s_cselect_b32 s52, {L_P}, s52")
e("  s_cselect_b32 s97, s51, 1.0")
e("  s_lshr_b32 s53, s40, 3")
e("  s_lshl_b32 s53, s53, 13")
e("  s_add_u32 s52, s52, s53")
e("  s_and_b32 s54, s55, 3")
e("  s_lshl_b32 s54, s54, 6")
e("  s_add_u32 s52, s52, s54")
e(f"  v_lshlrev_b32 v5, 10, v{V_G4}")
e("  v_lshl_add_u32 v5, v52, 2, v5")
e("  v_add_u32 v5, s52, v5")
e(f"  v_lshlrev_b32 v{V_G4}, 2, v{V_G4}")
e("  v_lshrrev_b32 v54, 4, v0")
e("  v_mul_u32_u24 v54, 144, v54")
e("  v_lshrrev_b32 v53, 1, v1")
e(f"  v_add3_u32 v54, v54, v53, s98")
e("  s_waitcnt vmcnt(4)")
e(f"  v_add_u32 v53, {L_W}, v{V_T16}")
e("  ds_write_b128 v53, v[8:11]")
e("  ds_write_b64 v54, v[12:13]")
e("  s_waitcnt vmcnt(0)")
e("  s_branch B_count")
e("B_layer:")
lds_init(False)
e("  s_waitcnt lgkmcnt(0)")
e("  s_barrier")
rec_loads()
e("  s_waitcnt vmcnt(0)")
e("B_count:")
for k in range(8):
    e(f"  v_lshlrev_b32 v{17+2*k}, 2, v{17+2*k}")
    e(f"  s_mov_b64 exec, s[{56+2*k}:{57+2*k}]")
    e(f"  ds_add_rtn_u32 v{32+k}, v{17+2*k}, v{V_ONE} offset:{L_CNT}")
    e("  s_mov_b64 exec, -1")
e("  s_waitcnt lgkmcnt(0)")
stamp(3)
e("  s_barrier")
stamp(4)
if OPT['warm3'] == 1:
    e("  s_cmp_lg_u32 s41, 0")
    e("  s_cbranch_scc1 B_nowarm3")
    e("  s_mul_i32 s50, s96, 404")
    e("  v_lshrrev_b32 v52, 2, v0")
    e("  v_add_u32 v52, s50, v52")
    e("  v_and_b32 v53, 3, v0")
    e("  v_lshlrev_b32 v53, 6, v53")
    e("  buffer_load_dword v6, v[52:53], s[12:15], 0 idxen offen")
    e("  v_add_u32 v52, 256, v52")
    e("  buffer_load_dword v7, v[52:53], s[12:15], 0 idxen offen")
    e("B_nowarm3:")
e("  v_lshlrev_b32 v52, 2, v2")
e(f"  ds_read_b32 v53, v52 offset:{L_CNT}")
e(f"  v_mov_b32 v52, {L_MAX}")
e("  ds_read_b32 v54, v52")
e(f"  v_cmp_gt_u32 vcc, {NPB}, v2")
e("  s_waitcnt lgkmcnt(0)")
e("  v_readfirstlane_b32 s42, v54")
e("  v_cndmask_b32 v53, 0, v53, vcc")
e("  v_add_u32 v53, 3, v53")
e("  v_lshrrev_b32 v53, 2, v53")
e("  v_mov_b32 v54, v53")
dpp_scan(54)
e(f"  v_sub_u32 v{V_START}, v54, v53")
e("  v_readlane_b32 s43, v54, 63")
for k in range(8):
    e(f"  ds_bpermute_b32 v{72+k}, v{17+2*k}, v{V_START}")
e("  s_waitcnt lgkmcnt(0)")
for k in range(8):
    e(f"  v_lshl_add_u32 v{72+k}, v{72+k}, 2, v{32+k}")
    e(f"  v_lshlrev_b32 v{72+k}, 2, v{72+k}")
    e(f"  s_mov_b64 exec, s[{56+2*k}:{57+2*k}]")
    e(f"  ds_write_b32 v{72+k}, v{16+2*k} offset:{L_LIST}")
    e("  s_mov_b64 exec, -1")
e("  s_cmp_lg_u32 s41, 0")
e("  s_cbranch_scc1 B_nomfma")
if OPT['warm3'] == 2:
    e("  s_mul_i32 s50, s96, 404")
    e("  v_lshrrev_b32 v52, 2, v0")
    e("  v_add_u32 v52, s50, v52")
    e("  v_and_b32 v53, 3, v0")
    e("  v_lshlrev_b32 v53, 6, v53")
    e("  buffer_load_dword v6, v[52:53], s[12:15], 0 idxen offen")
    e("  v_add_u32 v52, 256, v52")
    e("  buffer_load_dword v7, v[52:53], s[12:15], 0 idxen offen")
if OPT['warm2']:
    e("  s_mul_i32 s50, s96, 404")
    e("  v_lshrrev_b32 v20, 4, v0")
    e("  v_add_u32 v20, s50, v20")
    e("  v_mov_b32 v21, v1")
    for i in range(OPT['warm2']):
        e("  buffer_load_dwordx4 v[16:19], v[20:21], s[12:15], 0 idxen offen")
        e("  v_add_u32 v20, 64, v20")
e("  v_bfe_u32 v53, v0, 2, 2")
e("  v_bfe_u32 v54, v0, 4, 2")
e("  v_lshl_add_u32 v53, v54, 3, v53")
e("  v_lshlrev_b32 v53, 7, v53")
e("  v_and_b32 v54, 3, v0")
e("  v_lshl_add_u32 v53, v54, 3, v53")
e("  s_lshr_b32 s52, s55, 2")
e("  s_lshl_b32 s52, s52, 13")
e("  s_and_b32 s54, s55, 3")
e("  s_lshl_b32 s54, s54, 5")
e("  s_add_u32 s52, s52, s54")
e(f"  s_add_u32 s52, s52, {L_W}")
e("  v_add_u32 v53, s52, v53")
for sidx in range(2):
    for hh in range(2):
        e(f"  ds_read_b64_tr_b16 v[{8+4*sidx+2*hh}:{9+4*sidx+2*hh}], v53 offset:{sidx*4096 + hh*512}")
e("  v_and_b32 v53, 15, v0")
e("  s_lshr_b32 s52, s40, 3")
e("  s_lshl_b32 s52, s52, 5")
e("  v_add_u32 v53, s52, v53")
e("  v_mul_u32_u24 v53, 144, v53")
e("  v_bfe_u32 v54, v0, 4, 2")
e("  v_lshl_add_u32 v53, v54, 4, v53")
e("  v_add_u32 v53, s98, v53")
e("  ds_read_b128 v[56:59], v53")
e("  ds_read_b128 v[60:63], v53 offset:64")
e(f"  ds_read_b128 v[64:67], v53 offset:{16*144}")
e(f"  ds_read_b128 v[68:71], v53 offset:{16*144+64}")
e("  s_waitcnt lgkmcnt(0)")
e("  v_mfma_f32_16x16x32_bf16 v[80:83], v[56:59], v[8:11], 0")
e("  v_mfma_f32_16x16x32_bf16 v[84:87], v[64:67], v[8:11], 0")
e("  v_mfma_f32_16x16x32_bf16 v[80:83], v[60:63], v[12:15], v[80:83]")
e("  v_mfma_f32_16x16x32_bf16 v[84:87], v[68:71], v[12:15], v[84:87]")
e("  s_nop 7")
e("  s_nop 1")
for i in range(8):
    e(f"  v_mul_f32 v{80+i}, s97, v{80+i}")
if OPT['pair']:
    e("  s_cmp_lt_u32 s55, 4")
    e("  s_cselect_b32 s52, 0xc2000000, 0")
    for i in range(8):
        e(f"  v_add_f32 v{80+i}, s52, v{80+i}")
for i in range(4):
    e(f"  ds_write_b32 v5, v{80+i} offset:{i*256}")
    e(f"  ds_write_b32 v5, v{84+i} offset:{4096+i*256}")
e("  v_lshlrev_b32 v12, 16, v44")
e("  v_and_b32 v13, s49, v44")
e("  v_lshlrev_b32 v14, 16, v45")
e("  v_and_b32 v15, s49, v45")
for i in range(4):
    e(f"  v_mul_f32 v{12+i}, s51, v{12+i}")
e("B_nomfma:")
e("  s_waitcnt lgkmcnt(0)")
stamp(5)
e("  s_barrier")
stamp(6)
e("  s_mul_i32 s44, s43, s40")
e("  s_lshr_b32 s44, s44, 4")
e("  s_add_u32 s45, s40, 1")
e("  s_mul_i32 s45, s43, s45")
e("  s_lshr_b32 s45, s45, 4")
e("  s_cmp_eq_u32 s44, s45")
e("  s_cbranch_scc1 B_loop_end")
e("  s_lshl_b32 s50, s44, 4")
e(f"  v_add_u32 v{V_EADDR}, s50, v{V_G4}")
if OPT['prio']:
    e("  s_sub_u32 s50, s45, s44")
    fr = [(16, 32, 48), (32, 48, 58), (26, 45, 58), (20, 38, 54)][OPT['pq']]
    for rr, f in zip((52, 53, 54), fr):
        e(f"  s_mul_i32 s{rr}, s50, {f}")
        e(f"  s_lshr_b32 s{rr}, s{rr}, 6")
        e(f"  s_add_u32 s{rr}, s{rr}, s44")
    e("  s_setprio 3")

def node_setup():
    e(f"  v_cmp_ge_u32 vcc, s44, v{V_START}")
    e("  s_nop 3")
    e("  s_bcnt1_i32_b64 s47, vcc")
    e(f"  v_readlane_b32 s46, v{V_START}, s47")
    e("  s_sub_u32 s47, s47, 1")
    e("  s_lshl_b32 s50, s47, 8")
    e(f"  v_add_u32 v{V_FL}, s50, v1")
    e(f"  ds_read_b128 v[40:43], v{V_FL} offset:{L_P}")
    e("  s_min_u32 s46, s46, s45")
    e("  v_mov_b32 v44, 0")
    e("  v_mov_b32 v45, 0")
    e("  v_mov_b32 v46, 0")
    e("  v_mov_b32 v47, 0")
    e("  s_waitcnt lgkmcnt(0)")

def flush():
    e("  s_nop 1")
    e("  v_permlane32_swap_b32 v44, v46")
    e("  v_permlane32_swap_b32 v45, v47")
    e("  s_nop 1")
    e("  v_add_f32 v44, v44, v46")
    e("  v_add_f32 v45, v45, v47")
    e("  s_nop 1")
    e("  v_permlane16_swap_b32 v44, v45")
    e("  s_nop 1")
    e("  v_add_f32 v44, v44, v45")
    if OPT['pair']:
        e(f"  v_mul_f32 v44, v44, v{V_ONES}")
    e(f"  v_add_u32 v{V_FL}, v{V_FL}, v{V_G4}")
    e(f"  ds_add_f32 v{V_FL}, v44 offset:{L_AGG}")

def row_load(k, m):
    if not OPT['noload']:
        e(f"  buffer_load_dwordx4 v[{R[k]}:{R[k]+3}], v[{IDX[m]}:{IDX[m]+1}], s[12:15], 0 idxen offen")

for half in range(2):
    for m in range(4):
        e(f"  ds_read_u16 v{IDX[m]}, v{V_EADDR} offset:{L_LIST + 16*(4*half+m)}")
    e("  s_waitcnt lgkmcnt(0)")
    for m in range(4):
        row_load(4*half+m, m)
for m in range(4):
    e(f"  ds_read_u16 v{IDX[m]}, v{V_EADDR} offset:{L_LIST + 16*(8+m)}")
    e(f"  ds_read_u16_d16_hi v{EV[m]}, v{V_EADDR} offset:{L_LIST + 16*m + 2}")
node_setup()

def compute(k):
    r = R[k]; ev = EV[k]
    e(f"  v_pk_fma_f32 v[48:49], v[{ev}:{ev+1}], v[12:13], v[40:41] op_sel_hi:[0,1,1]")
    e(f"  v_pk_fma_f32 v[50:51], v[{ev}:{ev+1}], v[14:15], v[42:43] op_sel_hi:[0,1,1]")
    if OPT['dot2']:
        for i in range(4):
            e(f"  v_dot2_f32_bf16 v{48+i}, v{r+i}, s48, v{48+i}")
    else:
        for i in range(4):
            e(f"  v_lshlrev_b32 v{52+i}, 16, v{r+i}")
        e("  v_pk_add_f32 v[48:49], v[48:49], v[52:53]")
        e("  v_pk_add_f32 v[50:51], v[50:51], v[54:55]")
    if OPT['pair']:
        for i in range(4):
            e(f"  v_exp_f32_e64 v{48+i}, v{48+i} clamp")
        e(f"  v_pk_add_f32 v[48:49], v[48:49], v[{V_ONES}:{V_ONES+1}]")
        e(f"  v_pk_add_f32 v[50:51], v[50:51], v[{V_ONES}:{V_ONES+1}]")
        e("  v_pk_mul_f32 v[52:53], v[48:49], v[50:51]")
        e("  v_rcp_f32 v52, v52")
        e("  v_rcp_f32 v53, v53")
        e(f"  v_pk_mul_f32 v[54:55], v[{r}:{r+1}], v[50:51]")
        e(f"  v_pk_mul_f32 v[50:51], v[{r+2}:{r+3}], v[48:49]")
        e("  v_pk_fma_f32 v[44:45], v[54:55], v[52:53], v[44:45]")
        e("  v_pk_fma_f32 v[46:47], v[50:51], v[52:53], v[46:47]")
        return
    for i in range(4):
        e(f"  v_exp_f32 v{48+i}, v{48+i}")
    e(f"  v_pk_add_f32 v[48:49], v[48:49], v[{V_ONES}:{V_ONES+1}]")
    e(f"  v_pk_add_f32 v[50:51], v[50:51], v[{V_ONES}:{V_ONES+1}]")
    for i in range(4):
        e(f"  v_rcp_f32 v{48+i}, v{48+i}")
    if OPT['nomask']:
        e(f"  v_pk_fma_f32 v[44:45], v[{r}:{r+1}], v[48:49], v[44:45]")
        e(f"  v_pk_fma_f32 v[46:47], v[{r+2}:{r+3}], v[50:51], v[46:47]")
    else:
        for i in range(4):
            e(f"  v_and_b32 v{52+i}, s49, v{r+i}")
        e("  v_pk_fma_f32 v[44:45], v[52:53], v[48:49], v[44:45]")
        e("  v_pk_fma_f32 v[46:47], v[54:55], v[50:51], v[46:47]")

e("B_loop:")
if OPT['prio']:
    e("  s_cmp_ge_u32 s44, s52")
    e("  s_cbranch_scc0 B_prio_done")
    e("  s_setprio 2")
    e("  s_cmp_ge_u32 s44, s53")
    e("  s_cbranch_scc0 B_prio_done")
    e("  s_setprio 1")
    e("  s_cmp_ge_u32 s44, s54")
    e("  s_cbranch_scc0 B_prio_done")
    e("  s_setprio 0")
    e("B_prio_done:")
for k in range(8):
    e("  s_cmp_eq_u32 s44, s46")
    e(f"  s_cbranch_scc1 B_switch{k}")
    e(f"B_cont{k}:")
    e("  s_waitcnt vmcnt(7) lgkmcnt(6)")
    if not OPT['nocomp']:
        compute(k)
    else:
        e(f"  v_add_f32 v44, v44, v{R[k]}")
    row_load(k, k % 4)
    e(f"  ds_read_u16 v{IDX[k%4]}, v{V_EADDR} offset:{L_LIST + 16*(k+12)}")
    e(f"  ds_read_u16_d16_hi v{EV[(k+4)%8]}, v{V_EADDR} offset:{L_LIST + 16*(k+4) + 2}")
    e("  s_add_u32 s44, s44, 1")
e(f"  v_add_u32 v{V_EADDR}, 128, v{V_EADDR}")
e("  s_branch B_loop")
for k in range(8):
    e(f"B_switch{k}:")
    flush()
    e("  s_cmp_eq_u32 s44, s45")
    e("  s_cbranch_scc1 B_loop_end")
    node_setup()
    e(f"  s_branch B_cont{k}")
e("B_loop_end:")
e("  s_setprio 0")
e("  s_waitcnt vmcnt(0) lgkmcnt(0)")
stamp(7) if OPT['stamp']!=2 else None
e("  s_barrier")
stamp(8) if OPT['stamp']!=2 else None
e("  s_add_u32 s41, s41, 32")
e("  s_cmp_lt_u32 s41, s42")
e("  s_cbranch_scc1 B_layer")
e(f"  v_cmp_gt_u32 vcc, {NPB*16}, v0")
e("  s_and_saveexec_b64 s[54:55], vcc")
e("  s_cbranch_execz B_epi_end")
e(f"  ds_read_b128 v[40:43], v{V_T16} offset:{L_AGG}")
e("  s_waitcnt lgkmcnt(0)")
for i in range(4):
    e(f"  v_mul_f32 v{44+i}, s51, v{40+i}")
for i in range(4):
    e(f"  v_exp_f32 v{44+i}, v{44+i}")
e("  s_nop 0")
for i in range(4):
    e(f"  v_add_f32 v{44+i}, 1.0, v{44+i}")
for i in range(4):
    e(f"  v_rcp_f32 v{44+i}, v{44+i}")
e("  s_nop 0")
for i in range(4):
    e(f"  v_mul_f32 v{40+i}, v{40+i}, v{44+i}")
e("  v_cvt_pk_bf16_f32 v48, v40, v41")
e("  v_cvt_pk_bf16_f32 v49, v42, v43")
e("  v_lshlrev_b32 v50, 3, v0")
e(f"  s_mul_i32 s52, s2, {NPB*128}")
e("  buffer_store_dwordx2 v[48:49], v50, s[32:35], s52 offen" + ['', ' sc1', ' nt'][OPT['outflag']])
e("B_epi_end:")
if OPT['stamp'] in (1, 2):
    e("  s_waitcnt vmcnt(0)")
    stamp(9) if OPT['stamp']!=2 else None
    stamp_dump(10, 100)
    e("  s_mov_b64 exec, -1")
    e("  s_cmp_eq_u32 s2, 100")
    e("  s_cbranch_scc0 B_done")
    e("  s_load_dwordx2 s[92:93], s[0:1], 64")
    e("  s_waitcnt lgkmcnt(0)")
    e("  s_mov_b32 s94, 4096")
    e("  s_mov_b32 s95, 0x20000")
    e("  s_lshl_b32 s98, s40, 4")
    e("  s_add_u32 s98, s98, 64")
    e("  v_mov_b32 v1, s98")
    for i, st in enumerate((0, 1, 3, 7) if OPT['stamp']!=2 else (8, 9, 7, 1)):
        e(f"  s_sub_u32 s99, s{72+2*st}, s72")
        e(f"  v_mov_b32 v{4+i}, s99")
    e("  buffer_store_dwordx4 v[4:7], v1, s[92:95], 0 offen")
if OPT['rt']:
    e("  s_waitcnt vmcnt(0)")
    e("  s_mov_b64 exec, -1")
    e("  s_memrealtime s[92:93]")
    e("  s_load_dwordx2 s[94:95], s[0:1], 72")
    e("  s_waitcnt lgkmcnt(0)")
    e("  s_add_u32 s88, s94, 33619968")
    e("  s_addc_u32 s89, s95, 0")
    e("  s_mov_b32 s90, 0x10000")
    e("  s_mov_b32 s91, 0x20000")
    e("  v_lshrrev_b32 v1, 6, v0")
    e("  v_lshlrev_b32 v1, 3, v1")
    e("  s_lshl_b32 s98, s99, 7")
    e("  v_add_u32 v1, s98, v1")
    e("  v_mov_b32 v2, s100")
    e("  v_mov_b32 v3, s92")
    e("  s_mov_b64 exec, 1")
    e("  buffer_store_dwordx2 v[2:3], v1, s[88:91], 0 offen")
e("B_done:")
e("  s_endpgm")

e('.section .rodata,"a"')
for name, vg, sg in (("prep_kernel", 88, 72 if OPT['rt'] else 56), ("agg_kernel", 128, 100)):
    if OPT['stamp'] or (OPT['rt'] and name == 'agg_kernel'):
        sg = 102
    e(".p2align 6")
    e(f".amdhsa_kernel {name}")
    e(f"  .amdhsa_next_free_vgpr {vg}")
    e(f"  .amdhsa_next_free_sgpr {sg}")
    e(f"  .amdhsa_accum_offset {vg}")
    e("  .amdhsa_group_segment_fixed_size 0")
    e("  .amdhsa_kernarg_size 80")
    e("  .amdhsa_user_sgpr_count 2")
    e("  .amdhsa_user_sgpr_kernarg_segment_ptr 1")
    e("  .amdhsa_system_sgpr_workgroup_id_x 1")
    e(".end_amdhsa_kernel")

path = OPT.get('out', None)
open(OUTPATH, 'w').write('\n'.join(x for x in out if x is not None) + '\n')
```

```python
import sys

N = 12500
NB = 250
NPB = 50
CH = 3200
NW = 250
NG = 49
QH_OFF = 0
P_OFF = 0x400000
U_OFF = 0x800000
REC_OFF = 0xC00000
OFFS_OFF = 0x1400000
FR_OFF = 0x1500000
NLOG2E = 0xBFB8AA3B

OPT = dict(dot2=False, nomask=False, stamp=0, noload=0, nocomp=0, noflush=0, nodsr=0, stflag=1, outflag=1, pq=0, pair=0, soffs=0, warm2=2, qhi=0, warm3=0, rt=0, prio=1, warm=0, emptyA=0, emptyB=0, w0=0, bslot=0)
OUTPATH = 'standalone__edge_featured_mpnn_egc__graph.s'
for a in sys.argv[1:]:
    if '=' in a:
        k, v = a.split('=')
        if k == 'out':
            OUTPATH = v
        else:
            OPT[k] = int(v)

out = []
STF = ['', ' sc1', ' nt', ' sc0 sc1'][OPT['stflag']]
import re
def e(s=''):
    if s.lstrip().startswith('buffer_'):
        m = re.search(r'offset:(\d+)', s)
        assert not m or int(m.group(1)) < 4096, s
    if s.lstrip().startswith('ds_'):
        m = re.search(r'offset:(\d+)', s)
        assert not m or int(m.group(1)) < 65536, s
    out.append(s)

HEADER = """; Kernarg layout for this problem (80 bytes, ptrs only, base s[0:1]):
;   offset   0: d_in[0] x  shape=(12500, 64) dtype=bfloat16
;   offset   8: d_in[1] e_attr  shape=(800000, 1) dtype=bfloat16
;   offset  16: d_in[2] src  shape=(800000,) dtype=int32
;   offset  24: d_in[3] dst  shape=(800000,) dtype=int32
;   offset  32: d_in[4] u_w  shape=(64, 64) dtype=bfloat16
;   offset  40: d_in[5] v_w  shape=(64, 64) dtype=bfloat16
;   offset  48: d_in[6] g_w  shape=(129, 64) dtype=bfloat16
;   offset  56: d_out     shape=(12500, 64) dtype=bfloat16
;   offset  64: d_debug   256 bytes
;   offset  72: d_ws      268435456 bytes workspace
; @launch kernel=prep_kernel grid=(%d,1,1) block=(1024,1,1) lds=55296
; @launch kernel=agg_kernel grid=(%d,1,1) block=(1024,1,1) lds=93184
.amdgcn_target "amdgcn-amd-amdhsa--gfx950"
.text""" % (NW, NB)
e(HEADER)

def srd(d, lo, hi, size, add=None):
    if add is None:
        e(f"  s_mov_b32 s{d}, s{lo}")
        e(f"  s_mov_b32 s{d+1}, s{hi}")
    else:
        e(f"  s_add_u32 s{d}, s{lo}, {add}")
        e(f"  s_addc_u32 s{d+1}, s{hi}, 0")
    e(f"  s_mov_b32 s{d+2}, {size}")
    e(f"  s_mov_b32 s{d+3}, 0x20000")

KERN = ['A']
def stamp(idx):
    if not OPT['stamp']:
        return
    if (KERN[0] == 'A') != (OPT['stamp'] >= 3):
        return
    e(f"  s_memtime s[{72+2*idx}:{73+2*idx}]")
    e("  s_waitcnt lgkmcnt(0)")

def stamp_dump(nst, wg):
    if not OPT['stamp']:
        return
    if (KERN[0] == 'A') != (OPT['stamp'] >= 3):
        return
    lab = f"stamp_skip_{len(out)}"
    e("  s_mov_b64 exec, -1")
    e("  v_readfirstlane_b32 s98, v0")
    e("  s_nop 3")
    e(f"  s_cmp_eq_u32 s2, {wg}")
    e(f"  s_cbranch_scc0 {lab}")
    e("  s_cmp_eq_u32 s98, 0")
    e(f"  s_cbranch_scc0 {lab}")
    e("  s_load_dwordx2 s[92:93], s[0:1], 64")
    e("  s_waitcnt lgkmcnt(0)")
    e("  s_mov_b32 s94, 256")
    e("  s_mov_b32 s95, 0x20000")
    e("  v_mov_b32 v1, 0")
    for i in range(1, nst):
        e(f"  s_sub_u32 s98, s{72+2*i}, s72")
        e("  v_mov_b32 v2, s98")
        e(f"  buffer_store_dword v2, v1, s[92:95], 0 offen offset:{4*i}")
    e(f"{lab}:")

def dpp_scan(v):
    for sh in (1, 2, 4, 8):
        e("  s_nop 1")
        e(f"  v_add_u32_dpp v{v}, v{v}, v{v} row_shr:{sh} row_mask:0xf bank_mask:0xf bound_ctrl:0")
    e("  s_nop 1")
    e(f"  v_add_u32_dpp v{v}, v{v}, v{v} row_bcast:15 row_mask:0xa bank_mask:0xf")
    e("  s_nop 1")
    e(f"  v_add_u32_dpp v{v}, v{v}, v{v} row_bcast:31 row_mask:0xc bank_mask:0xf")
    e("  s_nop 1")

LW0 = 36864
LW1 = LW0 + 9216
LDS_A = LW1 + 9216

def rt_endA():
    if OPT['rt']:
        e("  s_waitcnt vmcnt(0)")
        e("  s_mov_b64 exec, -1")
        e("  s_memrealtime s[56:57]")
        e("  s_load_dwordx2 s[58:59], s[0:1], 72")
        e("  s_waitcnt lgkmcnt(0)")
        e("  s_add_u32 s52, s58, 0x2000000")
        e("  s_addc_u32 s53, s59, 0")
        e("  s_mov_b32 s54, 0x10000")
        e("  s_mov_b32 s55, 0x20000")
        e("  v_lshrrev_b32 v1, 6, v0")
        e("  v_lshlrev_b32 v1, 3, v1")
        e("  s_lshl_b32 s62, s2, 7")
        e("  v_add_u32 v1, s62, v1")
        e("  v_mov_b32 v2, s64")
        e("  v_mov_b32 v3, s56")
        e("  s_mov_b64 exec, 1")
        e("  buffer_store_dwordx2 v[2:3], v1, s[52:55], 0 offen")

e(".globl prep_kernel")
e(".p2align 8")
e(".type prep_kernel,@function")
e("prep_kernel:")
if OPT['emptyA']:
    e("  s_endpgm")
e(f"  s_cmp_ge_u32 s2, {NW}")
e("  s_cbranch_scc1 A_done")
if OPT['rt']:
    e("  s_memrealtime s[64:65]")
stamp(0)
e("  s_load_dwordx16 s[4:19], s[0:1], 0")
e("  s_load_dwordx2 s[20:21], s[0:1], 72")
e("  v_lshrrev_b32 v1, 6, v0")
e("  s_nop 0")
e("  v_readfirstlane_b32 s23, v1")
e("  s_nop 3")
e("  s_cmp_ge_u32 s23, 8")
e("  s_cbranch_scc1 A_gemm")
e("  s_cmp_eq_u32 s23, 7")
e("  s_cbranch_scc1 A_done")
D0, S0, E0, PR, AD, RK, BS = 8, 16, 24, 28, 44, 52, 60
e("  s_waitcnt lgkmcnt(0)")
e(f"  s_mul_i32 s22, s2, {CH*4}")
srd(24, 10, 11, CH*4, "s22")
srd(28, 8, 9, CH*4, "s22")
e(f"  s_mul_i32 s22, s2, {CH*2}")
srd(32, 6, 7, CH*2, "s22")
e("  v_lshlrev_b32 v1, 4, v0")
e("  v_lshlrev_b32 v2, 5, v0")
e(f"  v_cmp_gt_u32 vcc, {CH//8}, v0")
e("  s_mov_b64 s[44:45], vcc")
e("  s_mov_b64 exec, s[44:45]")
e(f"  buffer_load_dwordx4 v[{D0}:{D0+3}], v2, s[24:27], 0 offen")
e(f"  buffer_load_dwordx4 v[{D0+4}:{D0+7}], v2, s[24:27], 0 offen offset:16")
e(f"  buffer_load_dwordx4 v[{S0}:{S0+3}], v2, s[28:31], 0 offen")
e(f"  buffer_load_dwordx4 v[{S0+4}:{S0+7}], v2, s[28:31], 0 offen offset:16")
e(f"  buffer_load_dwordx4 v[{E0}:{E0+3}], v1, s[32:35], 0 offen")
e("  s_mov_b64 exec, -1")
e(f"  s_mul_i32 s22, s2, {CH*8}")
e(f"  s_add_u32 s22, s22, {REC_OFF}")
srd(36, 20, 21, CH*8, "s22")
srd(40, 20, 21, 256*1024, OFFS_OFF)
e("  s_mov_b32 s48, 0xffff0000")
e("  s_and_b32 s49, s2, 63")
e("  s_lshl_b32 s49, s49, 4")
e("  s_lshr_b32 s50, s2, 6")
e("  s_lshl_b32 s50, s50, 2")
e("  s_add_u32 s49, s49, s50")
e("  v_lshlrev_b32 v3, 2, v0")
e("  v_mov_b32 v4, 0")
e("  v_mov_b32 v5, 1")
e("  ds_write_b32 v3, v4")
e("  s_waitcnt lgkmcnt(0)")
stamp(1)
e("  s_barrier")
stamp(2)
e("  s_mov_b64 exec, s[44:45]")
e("  s_waitcnt vmcnt(3)")
for i in range(8):
    e(f"  v_mul_u32_u24 v{AD+i}, 5243, v{D0+i}")
    e(f"  v_lshrrev_b32 v{AD+i}, 18, v{AD+i}")
    e(f"  v_mul_u32_u24 v{BS+i}, {NPB}, v{AD+i}")
    e(f"  v_sub_u32 v{PR+1+2*i}, v{D0+i}, v{BS+i}")
    e(f"  v_lshlrev_b32 v{AD+i}, 2, v{AD+i}")
    e(f"  ds_add_rtn_u32 v{RK+i}, v{AD+i}, v5")
e("  s_mov_b64 exec, -1")
e("  s_waitcnt lgkmcnt(0)")
stamp(3)
e("  s_barrier")
stamp(4)
e("  s_cmp_lg_u32 s23, 0")
e("  s_cbranch_scc1 A_skip3")
e("  ds_read_b128 v[72:75], v1")
e("  s_waitcnt lgkmcnt(0)")
e("  v_add_u32 v77, v72, v73")
e("  v_add_u32 v78, v77, v74")
e("  v_add_u32 v79, v78, v75")
e("  v_mov_b32 v80, v79")
dpp_scan(80)
e("  v_sub_u32 v68, v80, v79")
e("  v_add_u32 v69, v68, v72")
e("  v_add_u32 v70, v68, v77")
e("  v_add_u32 v71, v68, v78")
e("  ds_write_b128 v1, v[68:71] offset:1024")
e("  v_lshlrev_b32 v81, 12, v0")
for i in range(4):
    e(f"  v_lshl_or_b32 v{72+i}, v{72+i}, 16, v{68+i}")
    e(f"  buffer_store_dword v{72+i}, v81, s[40:43], s49 offen offset:{i*1024}")
e("A_skip3:")
e("  s_waitcnt lgkmcnt(0)")
stamp(5)
e("  s_barrier")
stamp(6)
e("  s_mov_b64 exec, s[44:45]")
for i in range(8):
    e(f"  ds_read_b32 v{BS+i}, v{AD+i} offset:1024")
e("  s_waitcnt vmcnt(0)")
for i in range(4):
    e(f"  v_lshl_or_b32 v{PR+4*i}, v{E0+i}, 16, v{S0+2*i}")
    e(f"  v_and_or_b32 v{PR+4*i+2}, v{E0+i}, s48, v{S0+2*i+1}")
e("  s_waitcnt lgkmcnt(0)")
for i in range(8):
    e(f"  v_add_lshl_u32 v{BS+i}, v{BS+i}, v{RK+i}, 3")
    e(f"  ds_write_b64 v{BS+i}, v[{PR+2*i}:{PR+1+2*i}] offset:2048")
e("  s_mov_b64 exec, -1")
e("  s_waitcnt lgkmcnt(0)")
stamp(7)
e("  s_barrier")
stamp(8)
for i in range(4):
    e(f"  ds_read_b128 v[{8+4*i}:{11+4*i}], v1 offset:{2048+448*16*i}")
for i in range(4):
    e(f"  s_movk_i32 s50, {448*16*i}")
    e(f"  s_waitcnt lgkmcnt({3-i})")
    e(f"  buffer_store_dwordx4 v[{8+4*i}:{11+4*i}], v1, s[36:39], s50 offen" + STF)
if OPT['stamp'] == 3:
    e("  s_waitcnt vmcnt(0)")
    stamp(9)
    stamp_dump(10, 100)
rt_endA()
e("  s_endpgm")

e("A_gemm:")
e("  s_waitcnt lgkmcnt(0)")
e("  s_sub_u32 s23, s23, 8")
e("  s_add_u32 s24, s16, 8192")
e("  s_addc_u32 s25, s17, 0")
e("  s_mov_b32 s26, 8192")
e("  s_mov_b32 s27, 0x20000")
srd(36, 14, 15, 8192)
srd(28, 4, 5, N*128)
srd(32, 20, 21, N*256, QH_OFF)
e("  v_subrev_u32 v1, 512, v0")
e("  v_lshlrev_b32 v2, 4, v1")
e("  buffer_load_dwordx4 v[24:27], v2, s[24:27], 0 offen")
e("  buffer_load_dwordx4 v[28:31], v2, s[36:39], 0 offen")
e(f"  s_mul_i32 s44, s2, {NPB}")
e("  s_lshr_b32 s45, s23, 1")
e("  s_lshl_b32 s45, s45, 4")
e("  s_add_u32 s44, s44, s45")
e("  v_and_b32 v3, 15, v0")
e("  v_bfe_u32 v4, v0, 4, 2")
e("  v_add_u32 v5, s44, v3")
e("  v_lshlrev_b32 v5, 7, v5")
e("  v_lshl_add_u32 v5, v4, 4, v5")
e("  buffer_load_dwordx4 v[16:19], v5, s[28:31], 0 offen")
e("  buffer_load_dwordx4 v[20:23], v5, s[28:31], 0 offen offset:64")
e("  s_barrier")
e("  v_bfe_u32 v6, v0, 2, 2")
e("  v_lshl_add_u32 v6, v4, 3, v6")
e("  v_lshlrev_b32 v6, 7, v6")
e("  v_and_b32 v7, 3, v0")
e("  v_lshl_add_u32 v6, v7, 3, v6")
e("  s_and_b32 s45, s23, 1")
e("  s_lshl_b32 s47, s45, 6")
e("  v_add_u32 v6, s47, v6")
e("  v_lshl_add_u32 v7, v4, 2, s44")
e("  v_lshlrev_b32 v7, 8, v7")
e("  v_lshl_add_u32 v7, v3, 2, v7")
e("  s_lshl_b32 s47, s45, 7")
e("  v_add_u32 v7, s47, v7")
e(f"  s_mov_b32 s46, 0x{NLOG2E:08x}")
e("  s_waitcnt vmcnt(2)")
e(f"  ds_write_b128 v2, v[24:27] offset:{LW0}")
e(f"  ds_write_b128 v2, v[28:31] offset:{LW1}")
e("  s_waitcnt lgkmcnt(0)")
e("  s_barrier")
for j in range(2):
    for mi, base in ((LW0, 24), (LW1, 32)):
        for sidx in range(2):
            for hh in range(2):
                e(f"  ds_read_b64_tr_b16 v[{base+16*j+4*sidx+2*hh}:{base+16*j+4*sidx+2*hh+1}], v6 offset:{mi + j*32 + sidx*4096 + hh*512}")
e("  s_waitcnt vmcnt(0) lgkmcnt(0)")
for j in range(2):
    A0 = 56 + 8*j
    e(f"  v_mfma_f32_16x16x32_bf16 v[{A0}:{A0+3}], v[16:19], v[{24+16*j}:{27+16*j}], 0")
    e(f"  v_mfma_f32_16x16x32_bf16 v[{A0+4}:{A0+7}], v[16:19], v[{32+16*j}:{35+16*j}], 0")
    e(f"  v_mfma_f32_16x16x32_bf16 v[{A0}:{A0+3}], v[20:23], v[{28+16*j}:{31+16*j}], v[{A0}:{A0+3}]")
    e(f"  v_mfma_f32_16x16x32_bf16 v[{A0+4}:{A0+7}], v[20:23], v[{36+16*j}:{39+16*j}], v[{A0+4}:{A0+7}]")
e("  s_barrier")
e("  s_nop 7")
e("  s_nop 3")
for j in range(2):
    A0 = 56 + 8*j
    for i in range(4):
        e(f"  v_mul_f32 v{A0+i}, s46, v{A0+i}")
    if OPT['qhi']:
        for i in range(4):
            e(f"  v_cvt_pk_bf16_f32 v{72+i}, v{A0+4+i}, v{A0+4+i}")
            e(f"  v_and_b32 v{72+i}, 0xffff, v{72+i}")
            e(f"  v_and_b32 v{A0+4+i}, 0x7fffffff, v{A0+i}")
            e(f"  v_sub_u32 v{A0+4+i}, v{A0+4+i}, v{72+i}")
            e(f"  v_add_u32 v{A0+4+i}, 0x8000, v{A0+4+i}")
            e(f"  v_max_i32 v{A0+4+i}, 0, v{A0+4+i}")
            e(f"  v_and_b32 v{A0+4+i}, 0xffff0000, v{A0+4+i}")
            e(f"  v_and_b32 v{A0+i}, 0x80000000, v{A0+i}")
            e(f"  v_or3_b32 v{72+i}, v{A0+4+i}, v{A0+i}, v{72+i}")
    else:
        for i in range(4):
            e(f"  v_cvt_pk_bf16_f32 v{72+i}, v{A0+i}, v{A0+4+i}")
    if OPT['nomask']:
        for i in range(4):
            e(f"  v_and_b32 v{72+i}, 0xffff, v{72+i}")
            e(f"  v_and_b32 v{A0+i}, 0x7fffffff, v{A0+4+i}")
            e(f"  v_sub_u32 v{A0+i}, v{A0+i}, v{72+i}")
            e(f"  v_add_u32 v{A0+i}, 0x8000, v{A0+i}")
            e(f"  v_max_i32 v{A0+i}, 0, v{A0+i}")
            e(f"  v_and_b32 v{A0+i}, 0xffff0000, v{A0+i}")
            e(f"  v_and_b32 v{A0+4+i}, 0x80000000, v{A0+4+i}")
            e(f"  v_or3_b32 v{72+i}, v{A0+i}, v{A0+4+i}, v{72+i}")
    for i in range(4):
        e(f"  buffer_store_dword v{72+i}, v7, s[32:35], 0 offen offset:{i*256+j*64}" + STF)
rt_endA()
e("A_done:")
e("  s_endpgm")

KERN[0] = 'B'
L_CNT = 0
L_MAX = 256
L_P = 1024
L_AGG = 17408
L_LIST = 33792
L_W = L_LIST + 32768 + 1024
L_X = L_W + 16384
LDS_B = L_X + 9216

V_G4, V_START, V_EADDR, V_T16, V_RB, V_REM = 88, 89, 90, 91, 92, 96
EV = [100 + 2*k for k in range(8)]
IDX = [116 + 2*m for m in range(4)]
V_FL, V_ONE, V_ONES = 124, 125, 126
R = [56 + 4*k for k in range(8)]

e(".globl agg_kernel")
e(".p2align 8")
e(".type agg_kernel,@function")
e("agg_kernel:")
if OPT['emptyB']:
    e("  s_endpgm")
e(f"  s_cmp_ge_u32 s2, {NB}")
e("  s_cbranch_scc1 B_done")
if OPT['rt']:
    e("  s_memrealtime s[100:101]")
    e("  s_mov_b32 s99, s2")
stamp(0)
e("  s_load_dwordx4 s[4:7], s[0:1], 48")
e("  s_load_dwordx2 s[8:9], s[0:1], 72")
e("  s_load_dwordx2 s[10:11], s[0:1], 0")
e("  s_load_dwordx2 s[46:47], s[0:1], 32")
e("  s_and_b32 s3, s2, 7")
e("  s_lshr_b32 s2, s2, 3")
e("  s_mov_b32 s96, s2")
e("  s_mul_i32 s44, s3, 31")
e("  s_min_u32 s3, s3, 2")
e("  s_add_u32 s2, s2, s44")
e("  s_add_u32 s2, s2, s3")
e("  v_lshrrev_b32 v3, 6, v0")
e("  v_and_b32 v1, 15, v0")
e("  v_readfirstlane_b32 s40, v3")
e("  v_lshlrev_b32 v1, 4, v1")
e("  v_and_b32 v2, 63, v0")
e("  s_waitcnt lgkmcnt(0)")
e("  v_lshrrev_b32 v3, 4, v0")
if OPT['soffs']:
    e("  s_lshl_b32 s50, s2, 10")
    e("  s_lshl_b32 s52, s40, 6")
    e("  s_add_u32 s50, s50, s52")
    e(f"  s_add_u32 s50, s50, {OFFS_OFF}")
    e("  s_add_u32 s20, s8, s50")
    e("  s_addc_u32 s21, s9, 0")
    e("  s_load_dwordx16 s[72:87], s[20:21], 0")
else:
    srd(20, 8, 9, 256*1024, OFFS_OFF)
    e(f"  v_lshlrev_b32 v{V_FL}, 4, v3")
    e("  s_lshl_b32 s50, s2, 10")
    e(f"  buffer_load_dwordx4 v[4:7], v{V_FL}, s[20:23], s50 offen")
e(f"  s_add_u32 s12, s8, {QH_OFF}")
e("  s_addc_u32 s13, s9, 0")
e("  s_or_b32 s13, s13, 0x01000000")
e(f"  s_mov_b32 s14, {N}")
e("  s_mov_b32 s15, 0x20000")
srd(16, 8, 9, NW*CH*8, REC_OFF)
srd(24, 10, 11, N*128)
e("  s_cmp_lt_u32 s40, 8")
e("  s_cselect_b32 s28, s4, s46")
e("  s_cselect_b32 s29, s5, s47")
e("  s_mov_b32 s30, 8192")
e("  s_mov_b32 s31, 0x20000")
srd(32, 6, 7, N*128)
srd(36, 4, 5, 129*128)
e("  s_and_b32 s55, s40, 7")
e(f"  s_mov_b32 s98, {L_X}")
e("  s_mov_b32 s48, 0x3f80")
e("  s_mov_b32 s49, 0xffff0000")
e(f"  s_mov_b32 s51, 0x{NLOG2E:08x}")
e(f"  v_lshlrev_b32 v{V_T16}, 4, v0")
e(f"  v_bfe_u32 v{V_G4}, v0, 4, 2")
e("  v_and_b32 v52, 15, v0")
e("  v_and_b32 v53, 511, v0")
e("  v_lshlrev_b32 v53, 4, v53")
e("  buffer_load_dwordx4 v[8:11], v53, s[28:31], 0 offen")
e(f"  s_mul_i32 s52, s2, {NPB*128}")
e("  v_lshlrev_b32 v53, 3, v0")
e("  buffer_load_dwordx2 v[12:13], v53, s[24:27], s52 offen")
e(f"  v_lshrrev_b32 v{V_EADDR}, 1, v1")
e(f"  v_add_u32 v{V_EADDR}, {128*128}, v{V_EADDR}")
e(f"  buffer_load_dwordx2 v[44:45], v{V_EADDR}, s[36:39], 0 offen")
def lds_init(first):
    e("  v_mov_b32 v48, 0xffff")
    e("  v_mov_b32 v49, 0xffff")
    e("  v_mov_b32 v50, 0xffff")
    e("  v_mov_b32 v51, 0xffff")
    e(f"  ds_write_b128 v{V_T16}, v[48:51] offset:{L_LIST}")
    e(f"  ds_write_b128 v{V_T16}, v[48:51] offset:{L_LIST+16384}")
    e("  v_lshlrev_b32 v53, 4, v2")
    e(f"  v_add_u32 v53, {L_LIST+32768}, v53")
    e("  ds_write_b128 v53, v[48:51]")
    e("  v_lshlrev_b32 v53, 2, v2")
    e("  v_mov_b32 v54, 0")
    e(f"  ds_write_b32 v53, v54 offset:{L_CNT}")
    if first:
        e(f"  v_mov_b32 v53, {L_MAX}")
        e("  s_mov_b64 exec, 1")
        e("  ds_write_b32 v53, v54")
        e("  s_mov_b64 exec, -1")

lds_init(True)
for k in range(8):
    e(f"  v_mov_b32 v{EV[k]}, 0")
for m in range(4):
    e(f"  v_mov_b32 v{IDX[m]+1}, v1")
e(f"  v_mov_b32 v{V_ONES}, {'0x2f800000' if OPT['pair'] else '1.0'}")
e(f"  v_mov_b32 v{V_ONES+1}, {'0x2f800000' if OPT['pair'] else '1.0'}")
e(f"  v_mov_b32 v{V_ONE}, 1")
e(f"  s_mov_b32 s45, {CH*8}")
e("  v_lshlrev_b32 v55, 1, v52")
e("  s_waitcnt lgkmcnt(0)")
stamp(1)
e("  s_barrier")
stamp(2)
e(f"  v_cmp_gt_u32 vcc, {NW-192}, v3")
if OPT['soffs']:
    e("  s_mov_b64 s[88:89], vcc")
    e("  v_bfe_u32 v53, v0, 4, 2")
    e("  v_cmp_eq_u32 s[90:91], 1, v53")
    e("  v_cmp_eq_u32 s[92:93], 2, v53")
    e("  v_cmp_eq_u32 s[94:95], 3, v53")
    for r in range(4):
        e(f"  v_mov_b32 v{4+r}, s{72+r}")
    for g in range(1, 4):
        for r in range(4):
            e(f"  v_mov_b32 v53, s{72+4*g+r}")
            e(f"  v_cndmask_b32 v{4+r}, v{4+r}, v53, s[{88+2*g}:{89+2*g}]")
    e("  v_cndmask_b32 v7, 0, v7, s[88:89]")
else:
    e("  s_waitcnt vmcnt(3)")
    e("  s_nop 0")
    e("  v_cndmask_b32 v7, 0, v7, vcc")
for r in range(4):
    e(f"  v_add_u32 v53, {64*r}, v3")
    e(f"  v_mul_lo_u32 v53, v53, s45")
    e(f"  v_and_b32 v54, 0xffff, v{4+r}")
    e(f"  v_add_u32 v54, v54, v55")
    e(f"  v_lshl_add_u32 v{V_RB+r}, v54, 3, v53")
    e(f"  v_lshrrev_b32 v{4+r}, 16, v{4+r}")
    e(f"  v_sub_u32 v{V_REM+r}, v{4+r}, v55")
e("  s_mov_b32 s41, 0")

def rec_loads():
    e("  s_lshl_b32 s50, s41, 3")
    e("  s_add_u32 s52, s41, 1")
    for r in range(4):
        for sub in range(2):
            k = r*2+sub
            e(f"  v_cmp_lt_i32 s[{56+2*k}:{57+2*k}], s{41 if sub==0 else 52}, v{V_REM+r}")
    e("  s_nop 3")
    for r in range(4):
        e(f"  s_or_b64 exec, s[{56+4*r}:{57+4*r}], 1")
        e(f"  buffer_load_dwordx4 v[{16+4*r}:{19+4*r}], v{V_RB+r}, s[16:19], s50 offen")
    e("  s_mov_b64 exec, -1")

rec_loads()
e("  v_max_u32 v4, v4, v5")
e("  v_max_u32 v6, v6, v7")
e("  v_max_u32 v4, v4, v6")
e("  s_nop 1")
e("  v_max_u32_dpp v4, v4, v4 row_bcast:15 row_mask:0xa bank_mask:0xf")
e("  s_nop 1")
e("  v_max_u32_dpp v4, v4, v4 row_bcast:31 row_mask:0xc bank_mask:0xf")
e("  s_nop 1")
e("  v_readlane_b32 s44, v4, 63")
e("  s_nop 3")
e("  v_mov_b32 v4, s44")
e(f"  v_mov_b32 v53, {L_MAX}")
e("  s_mov_b64 exec, 1")
e("  ds_max_u32 v53, v4")
e("  s_mov_b64 exec, -1")
e("  s_cmp_lt_u32 s55, 4")
e(f"  s_mov_b32 s52, {L_AGG}")
e(f"  s_cselect_b32 s52, {L_P}, s52")
e("  s_cselect_b32 s97, s51, 1.0")
e("  s_lshr_b32 s53, s40, 3")
e("  s_lshl_b32 s53, s53, 13")
e("  s_add_u32 s52, s52, s53")
e("  s_and_b32 s54, s55, 3")
e("  s_lshl_b32 s54, s54, 6")
e("  s_add_u32 s52, s52, s54")
e(f"  v_lshlrev_b32 v5, 10, v{V_G4}")
e("  v_lshl_add_u32 v5, v52, 2, v5")
e("  v_add_u32 v5, s52, v5")
e(f"  v_lshlrev_b32 v{V_G4}, 2, v{V_G4}")
e("  v_lshrrev_b32 v54, 4, v0")
e("  v_mul_u32_u24 v54, 144, v54")
e("  v_lshrrev_b32 v53, 1, v1")
e(f"  v_add3_u32 v54, v54, v53, s98")
e("  s_waitcnt vmcnt(4)")
e(f"  v_add_u32 v53, {L_W}, v{V_T16}")
e("  ds_write_b128 v53, v[8:11]")
e("  ds_write_b64 v54, v[12:13]")
e("  s_waitcnt vmcnt(0)")
e("  s_branch B_count")
e("B_layer:")
lds_init(False)
e("  s_waitcnt lgkmcnt(0)")
e("  s_barrier")
rec_loads()
e("  s_waitcnt vmcnt(0)")
e("B_count:")
for k in range(8):
    e(f"  v_lshlrev_b32 v{17+2*k}, 2, v{17+2*k}")
    e(f"  s_mov_b64 exec, s[{56+2*k}:{57+2*k}]")
    e(f"  ds_add_rtn_u32 v{32+k}, v{17+2*k}, v{V_ONE} offset:{L_CNT}")
    e("  s_mov_b64 exec, -1")
e("  s_waitcnt lgkmcnt(0)")
stamp(3)
e("  s_barrier")
stamp(4)
if OPT['warm3'] == 1:
    e("  s_cmp_lg_u32 s41, 0")
    e("  s_cbranch_scc1 B_nowarm3")
    e("  s_mul_i32 s50, s96, 404")
    e("  v_lshrrev_b32 v52, 2, v0")
    e("  v_add_u32 v52, s50, v52")
    e("  v_and_b32 v53, 3, v0")
    e("  v_lshlrev_b32 v53, 6, v53")
    e("  buffer_load_dword v6, v[52:53], s[12:15], 0 idxen offen")
    e("  v_add_u32 v52, 256, v52")
    e("  buffer_load_dword v7, v[52:53], s[12:15], 0 idxen offen")
    e("B_nowarm3:")
e("  v_lshlrev_b32 v52, 2, v2")
e(f"  ds_read_b32 v53, v52 offset:{L_CNT}")
e(f"  v_mov_b32 v52, {L_MAX}")
e("  ds_read_b32 v54, v52")
e(f"  v_cmp_gt_u32 vcc, {NPB}, v2")
e("  s_waitcnt lgkmcnt(0)")
e("  v_readfirstlane_b32 s42, v54")
e("  v_cndmask_b32 v53, 0, v53, vcc")
e("  v_add_u32 v53, 3, v53")
e("  v_lshrrev_b32 v53, 2, v53")
e("  v_mov_b32 v54, v53")
dpp_scan(54)
e(f"  v_sub_u32 v{V_START}, v54, v53")
e("  v_readlane_b32 s43, v54, 63")
for k in range(8):
    e(f"  ds_bpermute_b32 v{72+k}, v{17+2*k}, v{V_START}")
e("  s_waitcnt lgkmcnt(0)")
for k in range(8):
    e(f"  v_lshl_add_u32 v{72+k}, v{72+k}, 2, v{32+k}")
    e(f"  v_lshlrev_b32 v{72+k}, 2, v{72+k}")
    e(f"  s_mov_b64 exec, s[{56+2*k}:{57+2*k}]")
    e(f"  ds_write_b32 v{72+k}, v{16+2*k} offset:{L_LIST}")
    e("  s_mov_b64 exec, -1")
e("  s_cmp_lg_u32 s41, 0")
e("  s_cbranch_scc1 B_nomfma")
if OPT['warm3'] == 2:
    e("  s_mul_i32 s50, s96, 404")
    e("  v_lshrrev_b32 v52, 2, v0")
    e("  v_add_u32 v52, s50, v52")
    e("  v_and_b32 v53, 3, v0")
    e("  v_lshlrev_b32 v53, 6, v53")
    e("  buffer_load_dword v6, v[52:53], s[12:15], 0 idxen offen")
    e("  v_add_u32 v52, 256, v52")
    e("  buffer_load_dword v7, v[52:53], s[12:15], 0 idxen offen")
if OPT['warm2']:
    e("  s_mul_i32 s50, s96, 404")
    e("  v_lshrrev_b32 v20, 4, v0")
    e("  v_add_u32 v20, s50, v20")
    e("  v_mov_b32 v21, v1")
    for i in range(OPT['warm2']):
        e("  buffer_load_dwordx4 v[16:19], v[20:21], s[12:15], 0 idxen offen")
        e("  v_add_u32 v20, 64, v20")
e("  v_bfe_u32 v53, v0, 2, 2")
e("  v_bfe_u32 v54, v0, 4, 2")
e("  v_lshl_add_u32 v53, v54, 3, v53")
e("  v_lshlrev_b32 v53, 7, v53")
e("  v_and_b32 v54, 3, v0")
e("  v_lshl_add_u32 v53, v54, 3, v53")
e("  s_lshr_b32 s52, s55, 2")
e("  s_lshl_b32 s52, s52, 13")
e("  s_and_b32 s54, s55, 3")
e("  s_lshl_b32 s54, s54, 5")
e("  s_add_u32 s52, s52, s54")
e(f"  s_add_u32 s52, s52, {L_W}")
e("  v_add_u32 v53, s52, v53")
for sidx in range(2):
    for hh in range(2):
        e(f"  ds_read_b64_tr_b16 v[{8+4*sidx+2*hh}:{9+4*sidx+2*hh}], v53 offset:{sidx*4096 + hh*512}")
e("  v_and_b32 v53, 15, v0")
e("  s_lshr_b32 s52, s40, 3")
e("  s_lshl_b32 s52, s52, 5")
e("  v_add_u32 v53, s52, v53")
e("  v_mul_u32_u24 v53, 144, v53")
e("  v_bfe_u32 v54, v0, 4, 2")
e("  v_lshl_add_u32 v53, v54, 4, v53")
e("  v_add_u32 v53, s98, v53")
e("  ds_read_b128 v[56:59], v53")
e("  ds_read_b128 v[60:63], v53 offset:64")
e(f"  ds_read_b128 v[64:67], v53 offset:{16*144}")
e(f"  ds_read_b128 v[68:71], v53 offset:{16*144+64}")
e("  s_waitcnt lgkmcnt(0)")
e("  v_mfma_f32_16x16x32_bf16 v[80:83], v[56:59], v[8:11], 0")
e("  v_mfma_f32_16x16x32_bf16 v[84:87], v[64:67], v[8:11], 0")
e("  v_mfma_f32_16x16x32_bf16 v[80:83], v[60:63], v[12:15], v[80:83]")
e("  v_mfma_f32_16x16x32_bf16 v[84:87], v[68:71], v[12:15], v[84:87]")
e("  s_nop 7")
e("  s_nop 1")
for i in range(8):
    e(f"  v_mul_f32 v{80+i}, s97, v{80+i}")
if OPT['pair']:
    e("  s_cmp_lt_u32 s55, 4")
    e("  s_cselect_b32 s52, 0xc2000000, 0")
    for i in range(8):
        e(f"  v_add_f32 v{80+i}, s52, v{80+i}")
for i in range(4):
    e(f"  ds_write_b32 v5, v{80+i} offset:{i*256}")
    e(f"  ds_write_b32 v5, v{84+i} offset:{4096+i*256}")
e("  v_lshlrev_b32 v12, 16, v44")
e("  v_and_b32 v13, s49, v44")
e("  v_lshlrev_b32 v14, 16, v45")
e("  v_and_b32 v15, s49, v45")
for i in range(4):
    e(f"  v_mul_f32 v{12+i}, s51, v{12+i}")
e("B_nomfma:")
e("  s_waitcnt lgkmcnt(0)")
stamp(5)
e("  s_barrier")
stamp(6)
e("  s_mul_i32 s44, s43, s40")
e("  s_lshr_b32 s44, s44, 4")
e("  s_add_u32 s45, s40, 1")
e("  s_mul_i32 s45, s43, s45")
e("  s_lshr_b32 s45, s45, 4")
e("  s_cmp_eq_u32 s44, s45")
e("  s_cbranch_scc1 B_loop_end")
e("  s_lshl_b32 s50, s44, 4")
e(f"  v_add_u32 v{V_EADDR}, s50, v{V_G4}")
if OPT['prio']:
    e("  s_sub_u32 s50, s45, s44")
    fr = [(16, 32, 48), (32, 48, 58), (26, 45, 58), (20, 38, 54)][OPT['pq']]
    for rr, f in zip((52, 53, 54), fr):
        e(f"  s_mul_i32 s{rr}, s50, {f}")
        e(f"  s_lshr_b32 s{rr}, s{rr}, 6")
        e(f"  s_add_u32 s{rr}, s{rr}, s44")
    e("  s_setprio 3")

def node_setup():
    e(f"  v_cmp_ge_u32 vcc, s44, v{V_START}")
    e("  s_nop 3")
    e("  s_bcnt1_i32_b64 s47, vcc")
    e(f"  v_readlane_b32 s46, v{V_START}, s47")
    e("  s_sub_u32 s47, s47, 1")
    e("  s_lshl_b32 s50, s47, 8")
    e(f"  v_add_u32 v{V_FL}, s50, v1")
    e(f"  ds_read_b128 v[40:43], v{V_FL} offset:{L_P}")
    e("  s_min_u32 s46, s46, s45")
    e("  v_mov_b32 v44, 0")
    e("  v_mov_b32 v45, 0")
    e("  v_mov_b32 v46, 0")
    e("  v_mov_b32 v47, 0")
    e("  s_waitcnt lgkmcnt(0)")

def flush():
    e("  s_nop 1")
    e("  v_permlane32_swap_b32 v44, v46")
    e("  v_permlane32_swap_b32 v45, v47")
    e("  s_nop 1")
    e("  v_add_f32 v44, v44, v46")
    e("  v_add_f32 v45, v45, v47")
    e("  s_nop 1")
    e("  v_permlane16_swap_b32 v44, v45")
    e("  s_nop 1")
    e("  v_add_f32 v44, v44, v45")
    if OPT['pair']:
        e(f"  v_mul_f32 v44, v44, v{V_ONES}")
    e(f"  v_add_u32 v{V_FL}, v{V_FL}, v{V_G4}")
    e(f"  ds_add_f32 v{V_FL}, v44 offset:{L_AGG}")

def row_load(k, m):
    if not OPT['noload']:
        e(f"  buffer_load_dwordx4 v[{R[k]}:{R[k]+3}], v[{IDX[m]}:{IDX[m]+1}], s[12:15], 0 idxen offen")

for half in range(2):
    for m in range(4):
        e(f"  ds_read_u16 v{IDX[m]}, v{V_EADDR} offset:{L_LIST + 16*(4*half+m)}")
    e("  s_waitcnt lgkmcnt(0)")
    for m in range(4):
        row_load(4*half+m, m)
for m in range(4):
    e(f"  ds_read_u16 v{IDX[m]}, v{V_EADDR} offset:{L_LIST + 16*(8+m)}")
    e(f"  ds_read_u16_d16_hi v{EV[m]}, v{V_EADDR} offset:{L_LIST + 16*m + 2}")
node_setup()

def compute(k):
    r = R[k]; ev = EV[k]
    e(f"  v_pk_fma_f32 v[48:49], v[{ev}:{ev+1}], v[12:13], v[40:41] op_sel_hi:[0,1,1]")
    e(f"  v_pk_fma_f32 v[50:51], v[{ev}:{ev+1}], v[14:15], v[42:43] op_sel_hi:[0,1,1]")
    if OPT['qhi']:
        e(f"  v_pk_add_f32 v[48:49], v[48:49], v[{r}:{r+1}]")
        e(f"  v_pk_add_f32 v[50:51], v[50:51], v[{r+2}:{r+3}]")
    elif OPT['dot2']:
        for i in range(4):
            e(f"  v_dot2_f32_bf16 v{48+i}, v{r+i}, s48, v{48+i}")
    else:
        for i in range(4):
            e(f"  v_lshlrev_b32 v{52+i}, 16, v{r+i}")
        e("  v_pk_add_f32 v[48:49], v[48:49], v[52:53]")
        e("  v_pk_add_f32 v[50:51], v[50:51], v[54:55]")
    if OPT['pair']:
        for i in range(4):
            e(f"  v_exp_f32_e64 v{48+i}, v{48+i} clamp")
        e(f"  v_pk_add_f32 v[48:49], v[48:49], v[{V_ONES}:{V_ONES+1}]")
        e(f"  v_pk_add_f32 v[50:51], v[50:51], v[{V_ONES}:{V_ONES+1}]")
        e("  v_pk_mul_f32 v[52:53], v[48:49], v[50:51]")
        e("  v_rcp_f32 v52, v52")
        e("  v_rcp_f32 v53, v53")
        e(f"  v_pk_mul_f32 v[54:55], v[{r}:{r+1}], v[50:51]")
        e(f"  v_pk_mul_f32 v[50:51], v[{r+2}:{r+3}], v[48:49]")
        e("  v_pk_fma_f32 v[44:45], v[54:55], v[52:53], v[44:45]")
        e("  v_pk_fma_f32 v[46:47], v[50:51], v[52:53], v[46:47]")
        return
    for i in range(4):
        e(f"  v_exp_f32 v{48+i}, v{48+i}")
    e(f"  v_pk_add_f32 v[48:49], v[48:49], v[{V_ONES}:{V_ONES+1}]")
    e(f"  v_pk_add_f32 v[50:51], v[50:51], v[{V_ONES}:{V_ONES+1}]")
    for i in range(4):
        e(f"  v_rcp_f32 v{48+i}, v{48+i}")
    if OPT['nomask']:
        e(f"  v_pk_fma_f32 v[44:45], v[{r}:{r+1}], v[48:49], v[44:45]")
        e(f"  v_pk_fma_f32 v[46:47], v[{r+2}:{r+3}], v[50:51], v[46:47]")
    else:
        for i in range(4):
            if OPT['qhi']:
                e(f"  v_lshlrev_b32 v{52+i}, 16, v{r+i}")
            else:
                e(f"  v_and_b32 v{52+i}, s49, v{r+i}")
        e("  v_pk_fma_f32 v[44:45], v[52:53], v[48:49], v[44:45]")
        e("  v_pk_fma_f32 v[46:47], v[54:55], v[50:51], v[46:47]")

e("B_loop:")
if OPT['prio']:
    e("  s_cmp_ge_u32 s44, s52")
    e("  s_cbranch_scc0 B_prio_done")
    e("  s_setprio 2")
    e("  s_cmp_ge_u32 s44, s53")
    e("  s_cbranch_scc0 B_prio_done")
    e("  s_setprio 1")
    e("  s_cmp_ge_u32 s44, s54")
    e("  s_cbranch_scc0 B_prio_done")
    e("  s_setprio 0")
    e("B_prio_done:")
for k in range(8):
    e("  s_cmp_eq_u32 s44, s46")
    e(f"  s_cbranch_scc1 B_switch{k}")
    e(f"B_cont{k}:")
    e("  s_waitcnt vmcnt(7) lgkmcnt(6)")
    if not OPT['nocomp']:
        compute(k)
    else:
        e(f"  v_add_f32 v44, v44, v{R[k]}")
    row_load(k, k % 4)
    e(f"  ds_read_u16 v{IDX[k%4]}, v{V_EADDR} offset:{L_LIST + 16*(k+12)}")
    e(f"  ds_read_u16_d16_hi v{EV[(k+4)%8]}, v{V_EADDR} offset:{L_LIST + 16*(k+4) + 2}")
    e("  s_add_u32 s44, s44, 1")
e(f"  v_add_u32 v{V_EADDR}, 128, v{V_EADDR}")
e("  s_branch B_loop")
for k in range(8):
    e(f"B_switch{k}:")
    flush()
    e("  s_cmp_eq_u32 s44, s45")
    e("  s_cbranch_scc1 B_loop_end")
    node_setup()
    e(f"  s_branch B_cont{k}")
e("B_loop_end:")
e("  s_setprio 0")
e("  s_waitcnt vmcnt(0) lgkmcnt(0)")
stamp(7) if OPT['stamp']!=2 else None
e("  s_barrier")
stamp(8) if OPT['stamp']!=2 else None
e("  s_add_u32 s41, s41, 32")
e("  s_cmp_lt_u32 s41, s42")
e("  s_cbranch_scc1 B_layer")
e(f"  v_cmp_gt_u32 vcc, {NPB*16}, v0")
e("  s_and_saveexec_b64 s[54:55], vcc")
e("  s_cbranch_execz B_epi_end")
e(f"  ds_read_b128 v[40:43], v{V_T16} offset:{L_AGG}")
e("  s_waitcnt lgkmcnt(0)")
for i in range(4):
    e(f"  v_mul_f32 v{44+i}, s51, v{40+i}")
for i in range(4):
    e(f"  v_exp_f32 v{44+i}, v{44+i}")
e("  s_nop 0")
for i in range(4):
    e(f"  v_add_f32 v{44+i}, 1.0, v{44+i}")
for i in range(4):
    e(f"  v_rcp_f32 v{44+i}, v{44+i}")
e("  s_nop 0")
for i in range(4):
    e(f"  v_mul_f32 v{40+i}, v{40+i}, v{44+i}")
e("  v_cvt_pk_bf16_f32 v48, v40, v41")
e("  v_cvt_pk_bf16_f32 v49, v42, v43")
e("  v_lshlrev_b32 v50, 3, v0")
e(f"  s_mul_i32 s52, s2, {NPB*128}")
e("  buffer_store_dwordx2 v[48:49], v50, s[32:35], s52 offen" + ['', ' sc1', ' nt'][OPT['outflag']])
e("B_epi_end:")
if OPT['stamp'] in (1, 2):
    e("  s_waitcnt vmcnt(0)")
    stamp(9) if OPT['stamp']!=2 else None
    stamp_dump(10, 100)
    e("  s_mov_b64 exec, -1")
    e("  s_cmp_eq_u32 s2, 100")
    e("  s_cbranch_scc0 B_done")
    e("  s_load_dwordx2 s[92:93], s[0:1], 64")
    e("  s_waitcnt lgkmcnt(0)")
    e("  s_mov_b32 s94, 4096")
    e("  s_mov_b32 s95, 0x20000")
    e("  s_lshl_b32 s98, s40, 4")
    e("  s_add_u32 s98, s98, 64")
    e("  v_mov_b32 v1, s98")
    for i, st in enumerate((0, 1, 3, 7) if OPT['stamp']!=2 else (8, 9, 7, 1)):
        e(f"  s_sub_u32 s99, s{72+2*st}, s72")
        e(f"  v_mov_b32 v{4+i}, s99")
    e("  buffer_store_dwordx4 v[4:7], v1, s[92:95], 0 offen")
if OPT['rt']:
    e("  s_waitcnt vmcnt(0)")
    e("  s_mov_b64 exec, -1")
    e("  s_memrealtime s[92:93]")
    e("  s_load_dwordx2 s[94:95], s[0:1], 72")
    e("  s_waitcnt lgkmcnt(0)")
    e("  s_add_u32 s88, s94, 33619968")
    e("  s_addc_u32 s89, s95, 0")
    e("  s_mov_b32 s90, 0x10000")
    e("  s_mov_b32 s91, 0x20000")
    e("  v_lshrrev_b32 v1, 6, v0")
    e("  v_lshlrev_b32 v1, 3, v1")
    e("  s_lshl_b32 s98, s99, 7")
    e("  v_add_u32 v1, s98, v1")
    e("  v_mov_b32 v2, s100")
    e("  v_mov_b32 v3, s92")
    e("  s_mov_b64 exec, 1")
    e("  buffer_store_dwordx2 v[2:3], v1, s[88:91], 0 offen")
e("B_done:")
e("  s_endpgm")

e('.section .rodata,"a"')
for name, vg, sg in (("prep_kernel", 88, 72 if OPT['rt'] else 56), ("agg_kernel", 128, 100)):
    if OPT['stamp'] or (OPT['rt'] and name == 'agg_kernel'):
        sg = 102
    e(".p2align 6")
    e(f".amdhsa_kernel {name}")
    e(f"  .amdhsa_next_free_vgpr {vg}")
    e(f"  .amdhsa_next_free_sgpr {sg}")
    e(f"  .amdhsa_accum_offset {vg}")
    e("  .amdhsa_group_segment_fixed_size 0")
    e("  .amdhsa_kernarg_size 80")
    e("  .amdhsa_user_sgpr_count 2")
    e("  .amdhsa_user_sgpr_kernarg_segment_ptr 1")
    e("  .amdhsa_system_sgpr_workgroup_id_x 1")
    e(".end_amdhsa_kernel")

path = OPT.get('out', None)
open(OUTPATH, 'w').write('\n'.join(x for x in out if x is not None) + '\n')
```
